```python
import torch

def _softmax(x, axis=-1):
    return torch.softmax(x, dim=axis)
def _gelu(x):
    return torch.nn.functional.gelu(x, approximate="tanh")
def _silu(x):
    return torch.nn.functional.silu(x)
def _sigmoid(x):
    return torch.sigmoid(x)
def _layernorm(x, axis=-1, eps=1e-5):
    m = x.mean(dim=axis, keepdim=True)
    v = x.var(dim=axis, keepdim=True, unbiased=False)
    return (x - m) / torch.sqrt(v + eps)
def _scatter_add(tgt, idx, src, axis=0):
    return tgt.clone().index_add_(axis, idx, src)
def _segment_sum(src, seg, n):
    out = torch.zeros((n,) + src.shape[1:], dtype=src.dtype)
    return out.index_add_(0, seg, src)
def _pad(x, pw):
    flat = tuple(v for pair in reversed(pw) for v in pair)
    return torch.nn.functional.pad(x, flat)

kernel_name = 'sequential_preLN__linear_attn_block__geglu_ffn__prompt'

def setup_inputs():

    _w = (lambda a: (lambda t: t.to(torch.bfloat16) if t.is_floating_point() else t)(torch.as_tensor(a)))
    def _A_setup():
        B, S, D = 1, 2048, 640
        return {
            "x": _w((lambda *s: torch.randn(*s, dtype=torch.bfloat16) * 0.05)(B, S, D)),
            "wqkv": _w((lambda *s: torch.randn(*s, dtype=torch.bfloat16) * 0.05)(D, 3 * D)),
            "wo": _w((lambda *s: torch.randn(*s, dtype=torch.bfloat16) * 0.05)(D, D)),
        }
    _A_in = _A_setup()

    def _B_setup():
        B, S, D, F = 1, 2048, 640, 1728
        return {
            "x": _w((lambda *s: torch.randn(*s, dtype=torch.bfloat16) * 0.05)(B, S, D)),
            "w_gate": _w((lambda *s: torch.randn(*s, dtype=torch.bfloat16) * 0.05)(D, F)),
            "w_up": _w((lambda *s: torch.randn(*s, dtype=torch.bfloat16) * 0.05)(D, F)),
            "w_down": _w((lambda *s: torch.randn(*s, dtype=torch.bfloat16) * 0.05)(F, D)),
        }
    _B_in = _B_setup()

    return {
        "A_x": _A_in["x"],
        "A_wqkv": _A_in["wqkv"],
        "A_wo": _A_in["wo"],
        "B_x": _B_in["x"],
        "B_w_gate": _B_in["w_gate"],
        "B_w_up": _B_in["w_up"],
        "B_w_down": _B_in["w_down"],
    }

def reference(A_x, A_wqkv, A_wo, B_x, B_w_gate, B_w_up, B_w_down):
    def _A_ref(x, wqkv, wo):
        B, S, D = x.shape
        H = 32; Dh = D // H
        qkv = (lambda x, *d: x.permute(*d))((x @ wqkv).reshape(B, S, 3, H, Dh), 2, 0, 3, 1, 4)
        q, k, v = qkv[0], qkv[1], qkv[2]
        phi = lambda t: torch.where(t > 0, t + 1, torch.exp(t)) + 1e-6
        pq, pk = phi(q), phi(k)
        kv = torch.einsum("bhsd,bhse->bhde", pk, v)
        z = torch.einsum("bhsd->bhd", pk)
        num = torch.einsum("bhqd,bhde->bhqe", pq, kv)
        den = torch.einsum("bhqd,bhd->bhq", pq, z)[..., None] + 1e-6
        o = num / den
        return (lambda x, *d: x.permute(*d))(o, 0, 2, 1, 3).reshape(B, S, D) @ wo

    def _B_ref(x, w_gate, w_up, w_down):
        return (_gelu(x @ w_gate) * (x @ w_up)) @ w_down

    x = A_x
    h = x + _A_ref(_layernorm(x, axis=-1), A_wqkv, A_wo)
    h2 = h + _B_ref(_layernorm(h, axis=-1), B_w_gate, B_w_up, B_w_down)
    return h2
```

```python
import re

_REG = re.compile(r'^(-|\|)?(abs\()?([vas])(\d+|\[(\d+):(\d+)\])\)?\|?$')
TRANS = ('v_exp_f32', 'v_log_f32', 'v_rcp_f32', 'v_rsq_f32', 'v_sqrt_f32', 'v_sin_f32', 'v_cos_f32')

def regs_of(op):
    op = op.strip()
    if op in ('vcc', 'exec/', 'exec', 'm0', 'scc'):
        return [op]
    if op in ('vcc_lo', 'vcc_hi'):
        return ['vcc']
    m = _REG.match(op)
    if not m:
        return []
    k = m.group(3)
    if m.group(5) is not None:
        return [f'{k}{i}' for i in range(int(m.group(5)), int(m.group(6)) + 1)]
    return [f'{k}{m.group(4)}']

def split_ops(rest):
    out, cur, d = [], '', 0
    for ch in rest:
        if ch == '[': d += 1
        if ch == ']': d -= 1
        if ch == ',' and d == 0:
            out.append(cur.strip()); cur = ''
        else:
            cur += ch
    if cur.strip(): out.append(cur.strip())
    mods = ''
    if out:
        parts = out[-1].split(None, 1)
        out[-1] = parts[0]
        mods = parts[1] if len(parts) > 1 else ''
    return out, mods

class Asm:
    def __init__(self):
        self.lines = []
        self.pos = 0
        self.w = {}
        self.mfma_c_read = {}
        self.mfma_d = {}
        self.store_data = {}
        self.vmq = []
        self.lq = []
        self.nins = 0
        self.nops = 0
        self.auto_vm = 0
        self.auto_lg = 0

    def raw(self, s):
        self.lines.append(s)

    def comment(self, s):
        self.lines.append('; ' + s)

    def _nop(self, n):
        while n > 0:
            k = min(n, 16)
            self.lines.append(f's_nop {k-1}')
            self.pos += k; n -= k; self.nops += 1

    def flush_hazards(self):
        need = 0
        for r, (p, k) in self.w.items():
            d = {'mfma': 8, 'valu': 5 if (r[0] == 's' or r in ('vcc', 'exec')) else 2, 'trans': 2, 'salu': 1 if r == 'm0' else 0}[k]
            need = max(need, p + 1 + d - self.pos)
        for r, p in self.mfma_c_read.items(): need = max(need, p + 1 + 3 - self.pos)
        for r, p in self.store_data.items(): need = max(need, p + 1 + 2 - self.pos)
        if need > 0: self._nop(need)

    def label(self, name):
        self.lines.append(name + ':')

    def I(self, text, tag=None):
        text = text.strip()
        sp = text.split(None, 1)
        opc = sp[0]
        if opc.startswith(('buffer_', 'global_')) and len(self.vmq) >= 63:
            self.I('s_waitcnt vmcnt(62)'); self.vmq = self.vmq[-62:]; self.auto_vm += 1
        if opc.startswith('ds_') and len(self.lq) >= 15:
            if 'SMEM' in self.lq:
                self.I('s_waitcnt lgkmcnt(0)'); self.lq = []
            else:
                self.I('s_waitcnt lgkmcnt(14)'); self.lq = self.lq[-14:]
            self.auto_lg += 1
        ops, mods = split_ops(sp[1]) if len(sp) > 1 else ([], '')
        R = [regs_of(o) for o in ops]
        need = 0
        def req(reg, kinds, n):
            nonlocal need
            e = self.w.get(reg)
            if e and e[1] in kinds:
                need = max(need, e[0] + 1 + n - self.pos)
        dst, src = [], []
        kind = None
        is_dpp = ('row_' in mods) or ('quad_perm' in mods) or ('wave_' in mods)
        if opc.startswith('v_mfma'):
            kind = 'mfma'
            dst = R[0]; A, B, C = R[1], R[2], R[3]
            for r in A + B + C: req(r, ('valu', 'trans'), 2)
            for r in A + B: req(r, ('mfma',), 8)
            for r in C:
                e = self.mfma_d.get(r)
                if e and self.w.get(r, (0, ''))[1] == 'mfma':
                    if e[1] != tuple(C): need = max(need, e[0] + 1 + 6 - self.pos)
            for r in dst:
                e = self.mfma_d.get(r)
                if e and self.w.get(r, (0, ''))[1] == 'mfma' and tuple(C) != e[1]:
                    need = max(need, e[0] + 1 + 6 - self.pos)
            req('exec', ('valu',), 4)
            src = A + B + C
        elif opc.startswith('v_'):
            kind = 'trans' if opc.replace('_e32', '').replace('_e64', '') in TRANS else 'valu'
            base = opc
            if base.startswith('v_cmp'):
                dst = R[0]; src = sum(R[1:], [])
            elif base.startswith('v_permlane') and 'swap' in base:
                dst = R[0] + R[1]; src = R[0] + R[1]
                for r in src: req(r, ('valu', 'trans'), 2)
            elif '_co_' in base:
                dst = R[0] + R[1]; src = sum(R[2:], [])
            else:
                dst = R[0]; src = sum(R[1:], [])
                if base.startswith(('v_fmac', 'v_mac', 'v_dot2c', 'v_pk_fmac')): src = src + R[0]
                if base.startswith('v_cndmask') and len(ops) == 3: src = src + ['vcc']
            if base.startswith(('v_readfirstlane', 'v_readlane')):
                for r in R[1]: req(r, ('valu', 'trans'), 1)
                if len(R) > 2:
                    for r in R[2]: req(r, ('valu',), 4)
            if is_dpp:
                for r in src: req(r, ('valu', 'trans'), 2)
                req('exec', ('valu',), 5)
                src = src + dst
            for r in src:
                if r[0] == 's' or r == 'vcc': req(r, ('valu',), 2)
                if kind != 'trans': req(r, ('trans',), 1)
                else: req(r, ('trans',), 1)
                req(r, ('mfma',), 8)
            for r in dst:
                req(r, ('mfma',), 8)
                p = self.mfma_c_read.get(r)
                if p is not None: need = max(need, p + 1 + 3 - self.pos)
                p = self.store_data.get(r)
                if p is not None: need = max(need, p + 1 + 2 - self.pos)
        elif opc.startswith('ds_'):
            kind = 'ds'
            if opc.startswith(('ds_read', 'ds_bpermute', 'ds_permute', 'ds_swizzle')):
                dst = R[0]; src = sum(R[1:], [])
            else:
                src = sum(R, [])
            for r in src + dst: req(r, ('mfma',), 8)
            for r in dst:
                p = self.store_data.get(r)
                if p is not None: need = max(need, p + 1 + 1 - self.pos)
        elif opc.startswith(('buffer_', 'global_')):
            kind = 'vmem'
            lds = re.search(r'\blds\b', mods) is not None
            if opc.startswith('buffer_load') and not lds:
                dst = R[0]; src = sum(R[1:], [])
            else:
                src = sum(R, [])
            if lds: req('m0', ('salu',), 1)
            for r in src:
                if r[0] == 's' or r == 'vcc': req(r, ('valu',), 5)
            for r in src + dst: req(r, ('mfma',), 8)
            for r in dst:
                p = self.store_data.get(r)
                if p is not None: need = max(need, p + 1 + 1 - self.pos)
        elif opc.startswith('s_'):
            kind = 'salu'
            if opc.startswith(('s_cmp', 's_cbranch', 's_branch', 's_waitcnt', 's_barrier', 's_nop', 's_sleep', 's_endpgm', 's_setprio', 's_bitcmp')):
                dst = []
                src = sum(R, [])
            else:
                dst = R[0] if R else []
                src = sum(R[1:], [])
                if 'saveexec' in opc: dst = dst + ['exec']
            for r in src:
                req(r, ('valu',), 1)
            if opc.startswith('s_cbranch_vcc'): req('vcc', ('valu',), 2)
            if opc.startswith(('s_cbranch', 's_branch')):
                if need > 0: self._nop(need); need = 0
                self.flush_hazards()
        else:
            raise ValueError('unknown instr ' + text)
        if need > 0: self._nop(need)
        self.lines.append(text)
        p = self.pos
        if opc == 's_nop':
            self.pos += int(ops[0]) + 1
        else:
            self.pos += 1
        self.nins += 1
        wk = kind if kind in ('valu', 'trans', 'mfma', 'salu') else 'mem'
        for r in dst:
            if wk == 'mem': self.w.pop(r, None)
            else: self.w[r] = (p, wk)
            if wk != 'mfma': self.mfma_d.pop(r, None)
        if kind == 'mfma':
            for r in dst: self.mfma_d[r] = (p, tuple(dst))
            for r in R[3]: self.mfma_c_read[r] = p
        if kind == 'vmem' and ('store' in opc or 'atomic' in opc) and ('x3' in opc or 'x4' in opc):
            for r in R[0]: self.store_data[r] = p
        if kind == 'vmem': self.vmq.append(tag)
        if kind == 'ds': self.lq.append(tag)
        if opc.startswith(('s_load', 's_memtime', 's_memrealtime', 's_buffer_load')): self.lq.append('SMEM')
        if self.nins % 64 == 0:
            lim = self.pos - 24
            self.w = {k: v for k, v in self.w.items() if v[0] >= lim}
            self.mfma_c_read = {k: v for k, v in self.mfma_c_read.items() if v >= lim}
            self.store_data = {k: v for k, v in self.store_data.items() if v >= lim}

    def wait_vm(self, tag=None):
        if tag is None:
            n = 0
        else:
            if tag not in self.vmq: return
            idx = len(self.vmq) - 1 - self.vmq[::-1].index(tag)
            n = len(self.vmq) - 1 - idx
        n = min(n, 63)
        self.I(f's_waitcnt vmcnt({n})')
        self.vmq = self.vmq[len(self.vmq) - n:] if n else []

    def wait_lg(self, tag=None):
        if tag is None or 'SMEM' in self.lq:
            n = 0
        else:
            if tag not in self.lq: return
            idx = len(self.lq) - 1 - self.lq[::-1].index(tag)
            n = len(self.lq) - 1 - idx
        n = min(n, 15)
        self.I(f's_waitcnt lgkmcnt({n})')
        self.lq = self.lq[len(self.lq) - n:] if n else []

    def text(self):
        return '\n'.join(self.lines) + '\n'
```

```python
import sys
sys.path.insert(0, 'gen')
from asmlib import Asm

NAME = 'sequential_preLN__linear_attn_block__geglu_ffn__prompt'
FLG = 0; PART = 0x10000; OO = 0x200000; HH = 0x500000; ST = 0x800000; ACT = 0x900000; TS = 0x1000000; WS_SIZE = 0x1100000
XR = 102400
KVI = 81920
STAT = 98304
LOG2E = 0x3fb8aa3b
def f2u(x):
    import struct
    return struct.unpack('<I', struct.pack('<f', x))[0]

SX, SQKV, SWO, SWG, SWU, SWD, SOUT, SWS, SDBG = 's[4:7]', 's[8:11]', 's[12:15]', 's[16:19]', 's[20:23]', 's[24:27]', 's[28:31]', 's[32:35]', 's[36:39]'
sW, sX, sI, sRB, sG, sC2, sRG, sRH, sKH = 's40', 's41', 's42', 's43', 's44', 's45', 's46', 's47', 's48'
def V(b, n=1): return f'v{b}' if n == 1 else f'v[{b}:{b+n-1}]'
def A_(b, n=1): return f'a{b}' if n == 1 else f'a[{b}:{b+n-1}]'
MF = 'v_mfma_f32_16x16x32_bf16'
POLL_LIMIT = 400000

class AddrSet:
    def __init__(self, a, regs, cur): self.a, self.regs, self.cur = a, regs, cur
    def off(self, absolute, span=4096):
        if not (0 <= absolute - self.cur and absolute - self.cur + span <= 65536):
            d = absolute - self.cur
            for r in self.regs: self.a.I(f'v_add_u32 v{r}, {d & 0xffffffff:#x}, v{r}')
            self.cur = absolute
        return absolute - self.cur

def gemm_loop(a, frags, D):
    n = len(frags)
    for i in range(-D, n):
        if i + D < n:
            f = frags[i + D]
            for h in f.get('pre', []): h()
            f['reads']((i + D) % (D + 1), ('f', i + D))
        if i >= 0:
            f = frags[i]
            for t in f.get('vm', []): a.wait_vm(t)
            a.wait_lg(('f', i))
            f['mf'](i % (D + 1))
            for h in f.get('post', []): h()

def gen(stamps=False, upto=99, exp=''):
    a = Asm(); I = a.I
    nst = [0]
    def stamp():
        if not stamps: return
        k = nst[0]; nst[0] += 1
        assert k < 16
        I(('s_memtime' if stamps == 'clk' else 's_memrealtime') + ' s[80:81]'); a.wait_lg(); I(f's_mov_b32 s{64+k}, s80')
    def barrier(): I('s_barrier')
    lab = [0]
    def newlab(p='L'):
        lab[0] += 1; return f'{p}{lab[0]}'
    def arrive_and_poll(ctr_sreg_setup, expect, poll=True, arrive=True):
        skip = newlab('L_np')
        I(f's_cmp_lg_u32 {sW}, 0'); I(f's_cbranch_scc1 {skip}')
        ctr_sreg_setup()
        I('v_mov_b32 v60, 0')
        if arrive:
            I('v_mov_b32 v61, 1')
            I('s_mov_b64 s[96:97], exec'); I('s_mov_b64 exec, 1')
            I(f'buffer_atomic_add v61, v60, {SWS}, s50 offen sc1')
            I('s_mov_b64 exec, s[96:97]')
        if poll:
            lp, done = newlab('L_poll'), newlab('L_pd')
            I(f's_mov_b32 s51, {POLL_LIMIT}')
            a.label(lp)
            I(f'buffer_load_dword v61, v60, {SWS}, s50 offen sc1')
            I('s_waitcnt vmcnt(0)')
            I('v_readfirstlane_b32 s52, v61')
            I(f's_cmp_ge_u32 s52, {expect}'); I(f's_cbranch_scc1 {done}')
            I('s_sub_u32 s51, s51, 1'); I('s_cmp_lg_u32 s51, 0'); I(f's_cbranch_scc1 {lp}')
            a.label(done)
        a.label(skip)
        a.vmq = [t for t in a.vmq if t is not None or True]

    a.raw('; @launch grid=(256,1,1) block=(256,1,1) lds=163840')
    a.raw('.amdgcn_target "amdgcn-amd-amdhsa--gfx950"\n.text')
    a.raw(f'.globl {NAME}_kernel\n.p2align 8\n.type {NAME}_kernel,@function\n{NAME}_kernel:')
    I('s_cmp_ge_u32 s2, 256'); I('s_cbranch_scc1 L_end')
    I('s_load_dwordx16 s[64:79], s[0:1], 0'); I('s_load_dwordx4 s[80:83], s[0:1], 64')
    I('v_and_b32 v1, 63, v0'); I('v_and_b32 v2, 15, v0'); I('v_bfe_u32 v3, v0, 4, 2'); I('v_lshlrev_b32 v4, 4, v1')
    I('v_lshrrev_b32 v60, 6, v0'); I(f'v_readfirstlane_b32 {sW}, v60')
    I(f's_and_b32 {sX}, s2, 7'); I(f's_lshr_b32 {sI}, s2, 3'); I(f's_lshr_b32 {sRB}, {sI}, 4'); I(f's_and_b32 {sG}, {sI}, 15')
    I('v_and_b32 v60, 7, v1'); I('v_xor_b32 v60, v60, v3'); I('v_lshlrev_b32 v60, 4, v60')
    I('v_lshrrev_b32 v61, 3, v1'); I('v_mul_u32_u24 v5, 1280, v61'); I('v_add_u32 v5, v5, v60'); I('v_xor_b32 v6, 64, v5')
    for t in range(5):
        I(f'v_add_u32 v60, {64*t}, v1')
        I('v_mul_u32_u24 v61, 6554, v60'); I('v_lshrrev_b32 v61, 16, v61')
        I('v_mul_u32_u24 v62, 10, v61'); I('v_sub_u32 v62, v60, v62')
        I('v_and_b32 v63, 0x13, v61'); I('v_and_b32 v59, 4, v61'); I('v_lshl_or_b32 v63, v59, 1, v63')
        I('v_and_b32 v59, 8, v61'); I('v_lshrrev_b32 v59, 1, v59'); I('v_or_b32 v63, v63, v59')
        I(f'v_mul_u32_u24 v{9+t}, 3840, v63')
        I(f'v_lshl_add_u32 v{9+t}, v62, 4, v{9+t}')
        I('v_cmp_lt_u32 vcc, 4, v62'); I('v_mov_b32 v59, 1280'); I('v_mov_b32 v58, 2480')
        I('v_cndmask_b32 v59, v59, v58, vcc'); I(f'v_add_u32 v{9+t}, v{9+t}, v59')
    a.wait_lg()
    def srd(dst, lo, size):
        I(f's_mov_b32 s{dst}, s{lo}'); I(f's_mov_b32 s{dst+1}, s{lo+1}'); I(f's_mov_b32 s{dst+2}, {size}'); I(f's_mov_b32 s{dst+3}, 0x20000')
    srd(4, 64, 2048*1280); srd(8, 66, 640*3840); srd(32, 82, WS_SIZE); srd(36, 80, 256)
    srd(12, 68, 640*1280); srd(16, 72, 640*3456); srd(20, 74, 640*3456); srd(24, 76, 1728*1280); srd(28, 78, 2048*1280)
    stamp()
    I(f's_or_b32 s50, s2, {sW}'); I('s_cmp_lg_u32 s50, 0'); I('s_cbranch_scc1 L_noinit')
    I('v_lshlrev_b32 v60, 8, v1'); I('v_mov_b32 v61, 0')
    I(f'buffer_store_dword v61, v60, {SWS}, 0 offen sc1')
    I('s_waitcnt vmcnt(0)')
    I('v_mov_b32 v60, 0'); I('v_mov_b32 v61, 1')
    I('s_mov_b64 s[96:97], exec'); I('s_mov_b64 exec, 1')
    I(f'buffer_store_dword v61, v60, {SDBG}, 0 offen sc1')
    I('s_mov_b64 exec, s[96:97]')
    a.label('L_noinit')
    a.vmq = []
    I(f's_lshl_b32 s50, {sX}, 8'); I(f's_lshl_b32 s51, {sRB}, 7'); I('s_add_u32 s50, s50, s51'); I(f's_lshl_b32 s51, {sW}, 5'); I('s_add_u32 s50, s50, s51')
    I('s_mul_i32 s53, s50, 1280')
    for q in range(1, 4): I(f's_add_u32 s{53+q}, s53, {q*8*1280}')
    I(f's_mul_i32 s57, {sW}, 12288'); I(f's_add_u32 s57, s57, {XR}')
    I(f's_mul_i32 s58, {sW}, {32*3840}'); I(f's_mul_i32 s50, {sG}, 80'); I('s_add_u32 s58, s58, s50')
    I(f's_mul_i32 s59, {sW}, 5120')
    def x_dma(c):
        for q in range(4):
            I(f's_add_u32 m0, s57, {(c % 3)*4096 + q*1024 - c*128 & 0xffffffff:#x}')
            I(f'buffer_load_dwordx4 v{5 + (q & 1)}, {SX}, s{53+q} offen offset:{c*128} lds', tag=('x', c))
    def b1_dma(s):
        I(f's_add_u32 s50, s58, {s*128*3840}')
        for t in range(5):
            I(f's_add_u32 m0, s59, {s*20480 + t*1024}')
            I(f'buffer_load_dwordx4 v{9+t}, {SQKV}, s50 offen lds', tag=('b1', s))
    x_dma(0); x_dma(1); b1_dma(0); x_dma(2); b1_dma(1); b1_dma(2)
    I('v_lshrrev_b32 v60, 1, v2'); I('v_xor_b32 v60, v60, v3'); I('v_lshlrev_b32 v60, 4, v60'); I('v_lshl_add_u32 v7, v2, 7, v60')
    I('v_add_u32 v7, s57, v7'); I('v_xor_b32 v8, 64, v7')
    I('v_lshrrev_b32 v58, 2, v2'); I('v_and_b32 v60, 1, v3'); I('v_lshl_add_u32 v58, v60, 2, v58')
    I('v_lshrrev_b32 v60, 1, v3'); I('v_lshl_add_u32 v58, v60, 4, v58'); I('v_and_b32 v59, 3, v2')
    I('v_mul_u32_u24 v60, 160, v58'); I('v_lshl_add_u32 v14, v59, 3, v60')
    I('v_and_b32 v61, 1, v59'); I('v_mul_u32_u24 v61, 40, v61'); I('v_lshrrev_b32 v62, 1, v59'); I('v_mul_u32_u24 v62, 80, v62')
    I('v_add_u32 v15, 112, v60'); I('v_add_u32 v15, v15, v61'); I('v_sub_u32 v15, v15, v62')
    I('v_mul_u32_u24 v60, 96, v58'); I(f'v_add_u32 v60, {XR}, v60'); I('v_lshl_add_u32 v16, v59, 3, v60')
    I('v_cmp_eq_u32 vcc, 3, v59'); I('v_mov_b32 v61, 32'); I('v_mov_b32 v62, 72'); I('v_cndmask_b32 v61, v61, v62, vcc'); I('v_add_u32 v17, v60, v61')
    for t in range(3):
        I(f'v_add_u32 v60, {64*t}, v1')
        I('v_mul_u32_u24 v61, 10923, v60'); I('v_lshrrev_b32 v61, 16, v61')
        I('v_mul_u32_u24 v62, 6, v61'); I('v_sub_u32 v62, v60, v62'); I('v_min_u32 v62, 4, v62')
        I('v_and_b32 v63, 0x13, v61'); I('v_and_b32 v57, 4, v61'); I('v_lshl_or_b32 v63, v57, 1, v63')
        I('v_and_b32 v57, 8, v61'); I('v_lshrrev_b32 v57, 1, v57'); I('v_or_b32 v63, v63, v57')
        I(f'v_mul_u32_u24 v{18+t}, 3840, v63'); I(f'v_lshl_add_u32 v{18+t}, v62, 4, v{18+t}')
    I('v_and_b32 v57, 7, v1'); I('v_lshlrev_b32 v60, 1, v3'); I('v_xor_b32 v57, v57, v60'); I('v_lshlrev_b32 v57, 4, v57')
    I(f's_lshl_b32 s50, {sW}, 3'); I('v_lshrrev_b32 v56, 3, v1'); I('v_add_u32 v56, s50, v56')
    I('v_mul_u32_u24 v21, 1280, v56'); I('v_add_u32 v21, v21, v57')
    I('v_mul_u32_u24 v22, 3456, v56'); I('v_add_u32 v22, v22, v57')
    I(f's_lshr_b32 s50, {sW}, 1'); I(f's_mul_i32 s50, s50, {4*1280}'); I('v_add_u32 v23, s50, v21')
    I('v_bfe_u32 v60, v56, 2, 2'); I('v_mul_u32_u24 v60, 40, v60'); I('v_and_b32 v61, 3, v56'); I('v_add_u32 v60, v60, v61')
    I('v_lshrrev_b32 v61, 4, v56'); I('v_mul_u32_u24 v61, 20, v61'); I('v_add3_u32 v60, v60, v61, 16')
    I('v_mul_u32_u24 v24, 1280, v60'); I('v_add_u32 v24, v24, v57')
    I('v_lshrrev_b32 v60, 2, v2'); I('v_lshl_add_u32 v61, v3, 2, v60'); I('v_lshlrev_b32 v25, 7, v61')
    I('v_bfe_u32 v61, v61, 1, 2'); I('v_lshl_or_b32 v25, v61, 5, v25'); I('v_lshl_or_b32 v25, v59, 3, v25')
    I(f's_mul_i32 {sRG}, {sI}, 26'); I(f's_lshr_b32 {sRG}, {sRG}, 8')
    I(f's_mul_i32 s50, {sRG}, 10'); I(f's_sub_u32 {sC2}, {sI}, s50')
    I(f's_lshr_b32 {sRH}, {sW}, 1'); I(f's_and_b32 {sKH}, {sW}, 1')
    I(f's_cmp_eq_u32 {sW}, 2'); I('s_cbranch_scc1 L_im2'); I(f's_cmp_eq_u32 {sW}, 3'); I('s_cbranch_scc1 L_im3')
    I(f's_lshl_b32 s50, {sW}, 10'); I('v_add_u32 v26, s50, v4')
    I(f's_mul_i32 s50, {sW}, {2048+8}'); I(f's_add_u32 s50, s50, {KVI}'); I('v_add_u32 v27, s50, v4')
    I('s_branch L_imd')
    a.label('L_im2')
    I('v_lshl_add_u32 v60, v3, 4, v2'); I('v_add_u32 v60, 32, v60')
    I('v_lshrrev_b32 v61, 2, v2'); I('v_lshl_add_u32 v61, v61, 4, v59'); I('v_and_b32 v62, 1, v3'); I('v_lshl_add_u32 v61, v62, 2, v61')
    I('v_cmp_gt_u32 vcc, 2, v3'); I('v_cndmask_b32 v60, v61, v60, vcc'); I('v_lshlrev_b32 v60, 4, v60')
    I('v_add_u32 v61, 2, v3'); I('v_lshl_add_u32 v26, v61, 10, v60')
    I('v_lshlrev_b32 v61, 11, v3'); I('v_add_u32 v61, 1024, v61')
    I('v_lshlrev_b32 v62, 3, v62'); I('v_add_u32 v62, 4096, v62')
    I('v_cndmask_b32 v61, v62, v61, vcc'); I(f'v_add_u32 v61, {KVI}, v61'); I('v_add_u32 v27, v61, v60')
    I('s_branch L_imd')
    a.label('L_im3')
    I('v_bfe_u32 v61, v2, 2, 1')
    I('v_lshl_add_u32 v60, v61, 4, v2'); I('v_add_u32 v60, 32, v60')
    I('v_mul_u32_u24 v62, 17, v61'); I('v_lshl_add_u32 v62, v59, 2, v62'); I('v_add_u32 v62, 32, v62')
    I('v_cmp_gt_u32 vcc, 8, v2'); I('v_cndmask_b32 v60, v62, v60, vcc')
    I('v_mov_b32 v61, 9216'); I('v_mov_b32 v62, 6144'); I('v_cndmask_b32 v61, v61, v62, vcc')
    I('v_mov_b32 v62, 7168'); I('v_mov_b32 v63, 5120'); I('v_cndmask_b32 v62, v62, v63, vcc')
    I('v_lshrrev_b32 v63, 2, v2'); I('v_lshlrev_b32 v63, 4, v63'); I('v_lshl_add_u32 v63, v59, 2, v63')
    I('v_lshrrev_b32 v57, 1, v3'); I('v_add_u32 v63, v63, v57')
    I('v_add_u32 v56, 6, v3'); I('v_lshlrev_b32 v56, 10, v56')
    I('v_lshlrev_b32 v57, 3, v57'); I('v_add_u32 v57, 6144, v57')
    I('v_cmp_eq_u32 vcc, 0, v3')
    I('v_cndmask_b32 v60, v63, v60, vcc'); I('v_cndmask_b32 v61, v56, v61, vcc'); I('v_cndmask_b32 v62, v57, v62, vcc')
    I('v_lshlrev_b32 v60, 4, v60'); I('v_add_u32 v26, v61, v60'); I('v_add_u32 v27, v62, v60'); I(f'v_add_u32 v27, {KVI}, v27')
    I('v_cmp_eq_u32 vcc, 3, v3'); I(f'v_mov_b32 v60, {KVI+8192}'); I('v_lshl_add_u32 v60, v2, 3, v60')
    I('v_cndmask_b32 v27, v27, v60, vcc'); I('v_cndmask_b32 v26, v26, v4, vcc')
    a.label('L_imd')
    a.flush_hazards()
    I('v_lshlrev_b32 v60, 2, v3')
    for r in range(4):
        I(f'v_add_u32 v61, {r}, v60'); I(f'v_cmp_eq_u32 s[{84+2*r}:{85+2*r}], v61, v2')
    I('v_cmp_lt_u32 s[92:93], 7, v2'); I('v_cmp_eq_u32 s[94:95], 0, v2')
    ONES = 140
    for r in range(4): I(f'v_mov_b32 v{ONES+r}, 0x3f803f80')

    ACC, CS, RS, SQ, RING = 64, 104, 124, 132, 144
    XF = lambda kb, rt: A_((kb*2 + rt)*4, 4)
    b1a = AddrSet(a, [14, 15], 0)
    tiles1 = [('K0', 14, 0), ('K2', 14, 40), ('KV1', 15, 0), ('V0', 14, 80), ('V2', 14, 120)]
    def bq_dma():
        for n in range(5):
            I(f's_add_u32 s50, s58, {n*128*3840}')
            for t in range(3):
                I(f's_mul_i32 s51, {sW}, 3072') if (n == 0 and t == 0) else None
                I(f's_add_u32 m0, s51, {XR + n*12288 + t*1024}')
                I(f'buffer_load_dwordx4 v{18+t}, {SQKV}, s50 offen lds', tag='bq')
    frags = []
    post_dma = {0: [('x', 3)], 1: [('x', 4), ('b', 3)], 2: [('x', 5)], 3: [('x', 6), ('b', 4)], 4: [('x', 7)], 5: [('x', 8)], 6: [('x', 9)]}
    for kb in range(20):
        for ti, (nm, ar, o) in enumerate(tiles1):
            f = {'pre': [], 'post': []}
            if ti == 0 and kb % 2 == 0:
                c = kb // 2
                def pre_x(c=c):
                    a.wait_vm(('x', c))
                    for hh in range(2):
                        for rt in range(2):
                            I(f'ds_read_b128 {XF(2*c+hh, rt)}, v{7+hh} offset:{(c % 3)*4096 + rt*2048}', tag=('xr', c))
                f['pre'].append(pre_x)
                def post_x(c=c):
                    for k, v in post_dma.get(c, []):
                        (x_dma if k == 'x' else b1_dma)(v)
                    if c == 9:
                        barrier(); bq_dma()
                f['post'].append(post_x)
            if ti == 0 and kb % 4 == 0:
                def pre_b(s=kb // 4):
                    a.wait_vm(('b1', s)); barrier()
                f['pre'].append(pre_b)
            def reads(slot, tag, kb=kb, ar=ar, o=o):
                off = b1a.off(kb*5120, 5120)
                I(f'ds_read_b64_tr_b16 {V(RING+4*slot, 2)}, v{ar} offset:{off + o}', tag=tag)
                I(f'ds_read_b64_tr_b16 {V(RING+4*slot+2, 2)}, v{ar} offset:{off + o + 1280}', tag=tag)
            def mf(slot, kb=kb, ti=ti):
                B = V(RING+4*slot, 4)
                for rt in range(2):
                    d = V(ACC + (rt*5 + ti)*4, 4)
                    I(f'{MF} {d}, {XF(kb, rt)}, {B}, {d if kb else 0}')
                d = V(CS + ti*4, 4)
                I(f'{MF} {d}, {V(ONES, 4)}, {B}, {d if kb else 0}')
                if ti < 2:
                    d = V(RS + ti*4, 4); I(f'{MF} {d}, {XF(kb, ti)}, {V(ONES, 4)}, {d if kb else 0}')
                elif ti < 4:
                    d = V(SQ + (ti-2)*4, 4); I(f'{MF} {d}, {XF(kb, ti-2)}, {XF(kb, ti-2)}, {d if kb else 0}')
            f['reads'] = reads; f['mf'] = mf
            frags.append(f)
    gemm_loop(a, frags, 4)
    stamp()
    barrier()
    I('v_mov_b32 v144, 0'); I('v_mov_b32 v145, 0'); I('v_mov_b32 v146, 0'); I('v_mov_b32 v147, 0')
    I('v_lshlrev_b32 v60, 4, v0'); I(f'v_add_u32 v60, {KVI}, v60')
    I('ds_write_b128 v60, v[144:147]'); I('ds_write_b128 v60, v[144:147] offset:4096')
    MEAN, RSTD = 148, 156
    for k in range(8): I(f'v_cndmask_b32 v{RSTD+k}, 0, v{SQ+k}, s[{84+2*(k%4)}:{85+2*(k%4)}]')
    for sh in (8, 4, 2, 1):
        for k in range(8): I(f'v_add_f32 v{RSTD+k}, v{RSTD+k}, v{RSTD+k} row_ror:{sh} row_mask:0xf bank_mask:0xf')
    inv = f2u(1.0/640)
    for k in range(8): I(f'v_mul_f32 v{MEAN+k}, {inv:#x}, v{RS+k}')
    for k in range(8): I(f'v_mul_f32 v{RSTD+k}, {inv:#x}, v{RSTD+k}')
    for k in range(8): I(f'v_fma_f32 v{RSTD+k}, -v{MEAN+k}, v{MEAN+k}, v{RSTD+k}')
    for k in range(8): I(f'v_max_f32 v{RSTD+k}, 0, v{RSTD+k}')
    for k in range(8): I(f'v_add_f32 v{RSTD+k}, {f2u(1e-5):#x}, v{RSTD+k}')
    for k in range(8): I(f'v_rsq_f32 v{RSTD+k}, v{RSTD+k}')
    I(f's_lshl_b32 s50, {sW}, 9'); I(f's_add_u32 s50, s50, {STAT}')
    I('v_lshlrev_b32 v60, 4, v3'); I('v_add_u32 v60, s50, v60')
    I('s_mov_b64 s[96:97], exec'); I('s_mov_b64 exec, s[94:95]')
    for rt in range(2):
        I(f'ds_write_b128 v60, {V(MEAN+4*rt, 4)} offset:{rt*128}'); I(f'ds_write_b128 v60, {V(RSTD+4*rt, 4)} offset:{rt*128+64}')
    I('s_mov_b64 exec, s[96:97]')
    for rt in range(2):
        for ti in range(5):
            for r in range(4):
                x = ACC + (rt*5+ti)*4 + r
                I(f'v_fma_f32 v{x}, -v{MEAN+4*rt+r}, v{CS+4*ti}, v{x}')
    for rt in range(2):
        for ti in range(5):
            for r in range(4):
                x = ACC + (rt*5+ti)*4 + r
                I(f'v_mul_f32 v{x}, v{RSTD+4*rt+r}, v{x}')
    I('v_lshlrev_b32 v60, 2, v2'); I('v_add_u32 v60, s50, v60')
    MQ, RQ = 28, 30
    for rt in range(2):
        I(f'ds_read_b32 v{MQ+rt}, v60 offset:{rt*128}', tag='st'); I(f'ds_read_b32 v{RQ+rt}, v60 offset:{rt*128+64}', tag='st')
    I(f's_mov_b32 s51, {LOG2E:#x}'); I(f's_mov_b32 s52, {f2u(1e-6):#x}')
    def phi(regs, tmp, mask=None):
        n = len(regs)
        for k, x in enumerate(regs): I(f'v_mul_f32 v{tmp+k}, s51, v{x}')
        for k, x in enumerate(regs): I(f'v_min_f32 v{tmp+k}, 0, v{tmp+k}')
        for k, x in enumerate(regs): I(f'v_exp_f32 v{tmp+k}, v{tmp+k}')
        for k, x in enumerate(regs): I(f'v_max_f32 v{tmp+n+k}, 0, v{x}')
        for k, x in enumerate(regs): I(f'v_add_f32 v{tmp+n+k}, s52, v{tmp+n+k}')
        for k, x in enumerate(regs): I(f'v_add_f32 v{(x if mask is None else tmp+k)}, v{tmp+k}, v{tmp+n+k}')
        if mask is not None:
            for k, x in enumerate(regs): I(f'v_cndmask_b32 v{x}, v{x}, v{tmp+k}, {mask}')
    for ti in range(3):
        regs = [ACC + (rt*5+ti)*4 + r for rt in range(2) for r in range(4)]
        phi(regs, 164, mask='s[92:93]' if ti == 2 else None)
    FR = 180
    for ti in range(5):
        for rt in range(2):
            b = ACC + (rt*5+ti)*4
            I(f'v_cvt_pk_bf16_f32 v{FR+4*ti+2*rt}, v{b}, v{b+1}'); I(f'v_cvt_pk_bf16_f32 v{FR+4*ti+2*rt+1}, v{b+2}, v{b+3}')
    K0, K2, KV1, V0, V2, ON = [V(FR+4*k, 4) for k in range(5)] + [V(ONES, 4)]
    pairs = [(K0, V0), (K2, V2), (KV1, V0), (KV1, V2), (K0, KV1), (K2, KV1), (KV1, KV1), (K0, ON), (K2, ON), (KV1, ON)]
    KD = 200
    for t, (x, y) in enumerate(pairs): I(f'{MF} {V(KD+4*t, 4)}, {x}, {y}, 0')
    I(f's_mul_i32 s50, {sW}, 10240'); I('v_add_u32 v60, s50, v4')
    for t in range(10): I(f'ds_write_b128 v60, {V(KD+4*t, 4)} offset:{t*1024}')
    a.wait_lg(); barrier()
    for w in range(4): I(f'ds_read_b128 {V(KD+4*w, 4)}, v26 offset:{w*10240}')
    a.wait_lg()
    for r in range(4): I(f'v_add_f32 v{KD+r}, v{KD+r}, v{KD+4+r}')
    for r in range(4): I(f'v_add_f32 v{KD+8+r}, v{KD+8+r}, v{KD+12+r}')
    for r in range(4): I(f'v_add_f32 v{KD+r}, v{KD+r}, v{KD+8+r}')
    I(f's_lshl_b32 s50, {sG}, 16'); I(f's_lshl_b32 s51, {sX}, 13'); I('s_add_u32 s50, s50, s51'); I(f's_lshl_b32 s51, {sRB}, 12'); I('s_add_u32 s50, s50, s51')
    I(f's_add_u32 s50, s50, {PART}')
    I('v_lshlrev_b32 v32, 4, v0')
    I(f'buffer_store_dwordx4 {V(KD, 4)}, v32, {SWS}, s50 offen sc1', tag='part')
    I('v_mov_b32 v60, 0')
    I(f'buffer_load_dword v33, v60, {SDBG}, 0 offen sc1', tag='rdy')
    a.wait_vm('bq'); barrier()
    stamp()
    QA, QCS = 64, 88
    def b2_dma():
        I(f's_lshl_b32 s51, {sW}, 10'); I(f's_lshl_b32 s52, {sC2}, 7')
        for kb in range(20):
            g0 = kb*40*1280 if kb < 16 else (kb-16)*160*1280
            I(f's_add_u32 s50, s52, {g0}'); I(f's_add_u32 m0, s51, {kb*4096}')
            I(f'buffer_load_dwordx4 v{23 if kb < 16 else 24}, {SWO}, s50 offen lds', tag='b2')
    def f2_point():
        a.wait_vm(); barrier()
        skip = newlab('L_np'); lp = newlab('L_rdy'); ok = newlab('L_rok')
        I(f's_cmp_lg_u32 {sW}, 0'); I(f's_cbranch_scc1 {skip}')
        I(f's_mov_b32 s51, {POLL_LIMIT}'); I('v_mov_b32 v60, 0')
        a.label(lp)
        I('v_readfirstlane_b32 s52, v33'); I('s_cmp_lg_u32 s52, 0'); I(f's_cbranch_scc1 {ok}')
        I(f'buffer_load_dword v33, v60, {SDBG}, 0 offen sc1'); I('s_waitcnt vmcnt(0)')
        I('s_sub_u32 s51, s51, 1'); I('s_cmp_lg_u32 s51, 0'); I(f's_cbranch_scc1 {lp}')
        a.label(ok)
        I(f's_lshl_b32 s50, {sG}, 8'); I('v_mov_b32 v61, 1')
        I('s_mov_b64 s[96:97], exec'); I('s_mov_b64 exec, 1')
        I(f'buffer_atomic_add v61, v60, {SWS}, s50 offen sc1')
        I('s_mov_b64 exec, s[96:97]')
        a.label(skip)
        a.vmq = []
        b2_dma()
    frags = []
    tq = [(16, 0), (16, 40), (17, 0)]
    for kb in range(20):
        for ti, (ar, o) in enumerate(tq):
            f = {'pre': [], 'post': []}
            def reads(slot, tag, kb=kb, ar=ar, o=o):
                I(f'ds_read_b64_tr_b16 {V(RING+4*slot, 2)}, v{ar} offset:{kb*3072 + o}', tag=tag)
                I(f'ds_read_b64_tr_b16 {V(RING+4*slot+2, 2)}, v{ar} offset:{kb*3072 + o + 768}', tag=tag)
            def mf(slot, kb=kb, ti=ti):
                B = V(RING+4*slot, 4)
                for rt in range(2):
                    d = V(QA + (rt*3+ti)*4, 4); I(f'{MF} {d}, {B}, {XF(kb, rt)}, {d if kb else 0}')
                d = V(QCS + ti*4, 4); I(f'{MF} {d}, {B}, {V(ONES, 4)}, {d if kb else 0}')
            f['reads'] = reads; f['mf'] = mf
            if kb == 6 and ti == 0: f['post'].append(f2_point)
            frags.append(f)
    gemm_loop(a, frags, 4)
    for rt in range(2):
        for ti in range(3):
            for r in range(4):
                x = QA + (rt*3+ti)*4 + r
                I(f'v_fma_f32 v{x}, -v{MQ+rt}, v{QCS+4*ti+r}, v{x}')
    for rt in range(2):
        for k in range(12): I(f'v_mul_f32 v{QA+rt*12+k}, v{RQ+rt}, v{QA+rt*12+k}')
    I(f's_mov_b32 s51, {LOG2E:#x}'); I(f's_mov_b32 s52, {f2u(1e-6):#x}')
    for rt in range(2): phi([QA + rt*12 + k for k in range(12)], 164)
    QF = 104
    for rt in range(2):
        for k in range(6): I(f'v_cvt_pk_bf16_f32 v{QF+8*rt+k}, v{QA+rt*12+2*k}, v{QA+rt*12+2*k+1}')
        I(f'v_mov_b32 v{QF+8*rt+6}, 0'); I(f'v_mov_b32 v{QF+8*rt+7}, 0')
    stamp()
    arrive_and_poll(lambda: I(f's_lshl_b32 s50, {sG}, 8'), 16, arrive=False)
    barrier()
    stamp()
    PR = 164
    I(f's_lshl_b32 s50, {sG}, 16'); I(f's_add_u32 s50, s50, {PART}')
    for R in range(16):
        I(f'buffer_load_dwordx4 {V(PR+4*R, 4)}, v32, {SWS}, s50 offen sc1', tag=('pr', R))
        if R < 15: I('s_add_u32 s50, s50, 4096')
    XRES = 34
    I(f's_lshl_b32 s53, {sX}, 4'); I(f's_mul_i32 s50, {sRG}, 5'); I('s_add_u32 s53, s53, s50'); I(f's_mul_i32 s50, {sRH}, 3'); I('s_add_u32 s53, s53, s50')
    I(f's_mul_i32 s54, s53, {16*1280}'); I(f's_lshl_b32 s50, {sC2}, 7'); I('s_add_u32 s54, s54, s50'); I(f's_lshl_b32 s50, {sKH}, 6'); I('s_add_u32 s54, s54, s50')
    I('v_mul_u32_u24 v46, 1280, v2'); I('v_lshl_add_u32 v46, v3, 3, v46')
    for rr in range(3):
        I(f's_add_u32 s50, s54, {rr*16*1280}')
        for tt in range(2): I(f'buffer_load_dwordx2 {V(XRES+4*rr+2*tt, 2)}, v46, {SX}, s50 offen offset:{tt*32}', tag='xres')
    for R in range(1, 16):
        a.wait_vm(('pr', R))
        for r in range(4): I(f'v_add_f32 v{PR+r}, v{PR+r}, v{PR+4*R+r}')
    I(f'v_cvt_pk_bf16_f32 v{PR+4}, v{PR}, v{PR+1}'); I(f'v_cvt_pk_bf16_f32 v{PR+5}, v{PR+2}, v{PR+3}')
    I(f'ds_write_b64 v27, {V(PR+4, 2)}')
    a.wait_lg(); barrier()
    KF = 164
    I(f'v_add_u32 v60, {KVI}, v4')
    for k in range(8): I(f'ds_read_b128 {V(KF+4*k, 4)}, v60 offset:{k*1024}', tag=('kf', k))
    OA = 64
    for T in range(4):
        a.wait_lg(('kf', 2*T+1))
        for rt in range(2):
            d = V(OA + (rt*4+T)*4, 4)
            I(f'{MF} {d}, {V(KF+8*T, 4)}, {V(QF+8*rt, 4)}, 0')
        for rt in range(2):
            d = V(OA + (rt*4+T)*4, 4)
            I(f'{MF} {d}, {V(KF+8*T+4, 4)}, {V(QF+8*rt+4, 4)}, {d}')
    I(f's_mov_b32 s52, {f2u(1e-6):#x}')
    I('v_cmp_eq_u32 vcc, 0, v3')
    I(f's_lshl_b32 s50, {sX}, 4'); I(f's_lshl_b32 s51, {sRB}, 3'); I('s_add_u32 s50, s50, s51'); I(f's_lshl_b32 s51, {sW}, 1'); I('s_add_u32 s50, s50, s51')
    I('s_mul_i32 s50, s50, 20480'); I(f's_add_u32 s50, s50, {OO}')
    I(f's_lshl_b32 s51, {sG}, 10'); I('s_add_u32 s55, s50, s51')
    I(f's_lshr_b32 s51, {sG}, 2'); I('s_lshl_b32 s51, s51, 10'); I('s_add_u32 s56, s50, s51'); I(f's_and_b32 s51, {sG}, 3'); I('s_lshl_b32 s51, s51, 8'); I('s_add_u32 s56, s56, s51')
    I('s_add_u32 s56, s56, 16384')
    I('v_lshlrev_b32 v47, 4, v2'); I('v_lshl_add_u32 v47, v3, 3, v47')
    OP = 96
    for rt in range(2):
        b = OA + rt*16
        I(f'v_add_f32 v{b+12}, s52, v{b+12}'); I(f'v_add_f32 v{b+13}, s52, v{b+13}')
        I(f'v_rcp_f32 v{b+12}, v{b+12}'); I(f'v_rcp_f32 v{b+13}, v{b+13}')
        I(f'v_cndmask_b32 v{b+14}, v{b+13}, v{b+12}, vcc')
        for T in range(3):
            for r in range(4): I(f'v_mul_f32 v{b+4*T+r}, v{b+12+T}, v{b+4*T+r}')
        for k in range(6): I(f'v_cvt_pk_bf16_f32 v{OP+8*rt+k}, v{b+2*k}, v{b+2*k+1}')
        I(f'buffer_store_dwordx4 {V(OP+8*rt, 4)}, v4, {SWS}, s55 offen sc1')
        I('s_mov_b32 exec_hi, 0')
        I(f'buffer_store_dwordx2 {V(OP+8*rt+4, 2)}, v47, {SWS}, s56 offen sc1')
        I('s_mov_b32 exec_hi, -1')
        if rt == 0: I('s_add_u32 s55, s55, 20480'); I('s_add_u32 s56, s56, 20480')
    a.wait_vm(); barrier()
    stamp()
    sig = lambda kb: (13 + kb if kb < 7 else kb - 7)
    def b3_dma(kbs):
        I(f's_lshl_b32 s51, {sW}, 10'); I(f's_lshl_b32 s52, {sI}, 7')
        for kb in kbs:
            I(f's_add_u32 s50, s52, {kb*32*3456}')
            I(f's_add_u32 m0, s51, {sig(kb)*8192}'); I(f'buffer_load_dwordx4 v22, {SWG}, s50 offen lds', tag=('b3', kb))
            I(f's_add_u32 m0, s51, {sig(kb)*8192+4096}'); I(f'buffer_load_dwordx4 v22, {SWU}, s50 offen lds', tag=('b3', kb))
    def ctr(base): return lambda: (I(f's_lshl_b32 s50, {sX}, 8'), I(f's_add_u32 s50, s50, {base*256}'))
    if upto >= 2:
        arrive_and_poll(ctr(16), 32)
        a.vmq = []
        b3_dma(range(7))
        barrier()
        stamp()
        I(f's_cmp_ge_u32 {sI}, 30'); I('s_cbranch_scc1 L_fin')
        AF2 = lambda kk, rr: A_((kk*3 + rr)*4, 4)
        I('s_mul_i32 s55, s53, 20480'); I(f's_lshl_b32 s50, {sKH}, 10'); I('s_add_u32 s55, s55, s50')
        I(f's_add_u32 s50, s55, {OO}')
        for kk in range(10):
            for rr in range(3):
                I(f's_add_u32 s51, s50, {rr*20480 + kk*2048}')
                I(f'buffer_load_dwordx4 {AF2(kk, rr)}, v4, {SWS}, s51 offen sc1', tag=('a2', kk))
        BR = 48
        def set_br(withkh, base):
            if withkh:
                I(f's_lshl_b32 s50, {sKH}, 6'); I('v_xor_b32 v60, s50, v25'); I(f's_lshl_b32 s50, {sKH}, 12'); I(f's_add_u32 s50, s50, {base}')
            else:
                I('v_mov_b32 v60, v25'); I(f's_mov_b32 s50, {base}')
            for t in range(4):
                I(f'v_xor_b32 v{BR+t}, {t << 5}, v60'); I(f'v_add_u32 v{BR+t}, s50, v{BR+t}')
            return AddrSet(a, [BR, BR+1, BR+2, BR+3], base)
        def split_gemm(nk, AF, atag, loc, bset, hooks):
            frags = []
            for kk in range(nk):
                for t in range(4):
                    f = {'pre': [], 'post': [], 'vm': []}
                    def reads(slot, tag, kk=kk, t=t):
                        off = bset.off(loc(kk), 8192)
                        I(f'ds_read_b64_tr_b16 {V(RING+4*slot, 2)}, v{BR+t} offset:{off}', tag=tag)
                        I(f'ds_read_b64_tr_b16 {V(RING+4*slot+2, 2)}, v{BR+t} offset:{off + 2048}', tag=tag)
                    def mf(slot, kk=kk, t=t):
                        for rr in range(3):
                            d = V(ACC + (rr*4+t)*4, 4); I(f'{MF} {d}, {V(RING+4*slot, 4)}, {AF(kk, rr)}, {d if kk else 0}')
                    f['reads'] = reads; f['mf'] = mf
                    if t == 0: f['vm'].append((atag, kk))
                    for (hk, ht, where, h) in hooks:
                        if hk == kk and ht == t: f[where].append(h)
                    frags.append(f)
            gemm_loop(a, frags, 4)
        def exchange():
            barrier()
            I(f's_mul_i32 s50, {sW}, 6144'); I('v_add_u32 v60, s50, v4')
            I(f's_xor_b32 s50, {sW}, 1'); I('s_mul_i32 s50, s50, 6144'); I('v_add_u32 v61, s50, v4')
            for rr in range(3):
                for t in range(2): I(f'ds_write_b128 v60, {V(ACC+(rr*4+2+t)*4, 4)} offset:{(rr*2+t)*1024}')
            a.wait_lg(); barrier()
            for rr in range(3):
                for t in range(2): I(f'ds_read_b128 {V(ACC+(rr*4+2+t)*4, 4)}, v61 offset:{(rr*2+t)*1024}', tag=('ex', rr))
            for rr in range(3):
                a.wait_lg(('ex', rr))
                for k in range(8): I(f'v_add_f32 v{ACC+rr*16+k}, v{ACC+rr*16+k}, v{ACC+rr*16+8+k}')
        bset = set_br(True, 0)
        split_gemm(10, AF2, 'a2', lambda kk: kk*8192, bset, [])
        stamp()
        exchange()
        barrier()
        HP = 112
        T0 = 164
        I(f's_add_u32 s56, s55, {HH}'); I(f's_lshl_b32 s50, {sC2}, 11'); I('s_add_u32 s56, s56, s50')
        I('s_mul_i32 s57, s53, 2560'); I(f's_lshl_b32 s50, {sC2}, 8'); I('s_add_u32 s57, s57, s50'); I(f's_lshl_b32 s50, {sKH}, 7'); I('s_add_u32 s57, s57, s50'); I(f's_add_u32 s57, s57, {ST}')
        I('v_lshlrev_b32 v47, 3, v2')
        for rr in range(3):
            b = ACC + rr*16
            for k in range(4):
                x = XRES + 4*rr + k
                I(f'v_lshlrev_b32 v{T0+2*k}, 16, v{x}'); I(f'v_and_b32 v{T0+2*k+1}, 0xffff0000, v{x}')
            for k in range(8): I(f'v_add_f32 v{b+k}, v{b+k}, v{T0+k}')
            for k in range(4): I(f'v_cvt_pk_bf16_f32 v{HP+4*rr+k}, v{b+2*k}, v{b+2*k+1}')
            I(f's_add_u32 s50, s56, {rr*20480}')
            I(f'buffer_store_dwordx4 {V(HP+4*rr, 4)}, v4, {SWS}, s50 offen sc1')
            for k in range(4):
                x = HP + 4*rr + k
                I(f'v_lshlrev_b32 v{b+2*k}, 16, v{x}'); I(f'v_and_b32 v{b+2*k+1}, 0xffff0000, v{x}')
            s_, q_ = T0 + 8 + 4*rr, T0 + 9 + 4*rr
            I(f'v_add_f32 v{s_}, v{b}, v{b+1}'); I(f'v_mul_f32 v{q_}, v{b}, v{b}')
            I(f'v_fmac_f32 v{q_}, v{b+1}, v{b+1}')
            for k in range(2, 8):
                I(f'v_add_f32 v{s_}, v{s_}, v{b+k}'); I(f'v_fmac_f32 v{q_}, v{b+k}, v{b+k}')
        for sw in ('v_permlane16_swap_b32', 'v_permlane32_swap_b32'):
            for rr in range(3):
                for k in range(2): I(f'v_mov_b32 v{T0+8+4*rr+2+k}, v{T0+8+4*rr+k}')
            for rr in range(3):
                for k in range(2): I(f'{sw} v{T0+8+4*rr+k}, v{T0+8+4*rr+2+k}')
            for rr in range(3):
                for k in range(2): I(f'v_add_f32 v{T0+8+4*rr+k}, v{T0+8+4*rr+k}, v{T0+8+4*rr+2+k}')
        I('s_mov_b64 s[96:97], exec'); I('s_mov_b64 exec, 0xffff')
        for rr in range(3):
            I(f's_add_u32 s50, s57, {rr*2560}')
            I(f'buffer_store_dwordx2 {V(T0+8+4*rr, 2)}, v47, {SWS}, s50 offen sc1')
        I('s_mov_b64 exec, s[96:97]')
        a.wait_vm(); barrier()
        stamp()
    if upto >= 3:
        def b4_dma_list(bs):
            out = []
            for b in bs:
                loc = sig((b % 40) >> 1)*8192 + (b & 1)*4096
                out.append([f's_add_u32 s50, s59, {b*32*1280}', f's_add_u32 m0, s58, {loc}', (f'buffer_load_dwordx4 v21, {SWD}, s50 offen lds', ('b4', b))])
            return out
        def emit_group(g):
            for x in g:
                if isinstance(x, tuple): I(x[0], tag=x[1])
                else: I(x)
        I(f's_lshl_b32 s58, {sW}, 10'); I(f's_lshl_b32 s59, {sC2}, 7')
        I(f's_cmp_ge_u32 {sI}, 27'); I('s_cbranch_scc0 L_p3')
        arrive_and_poll(ctr(24), 0, poll=False)
        a.vmq = []
        for g in b4_dma_list(range(40)): emit_group(g)
        a.wait_vm()
        I('s_branch L_p4')
        a.label('L_p3')
        a.vmq = []; a.lq = []
        arrive_and_poll(ctr(24), 30)
        a.vmq = []
        b3_dma(range(7, 12))
        barrier()
        stamp()
        AF3 = lambda kb, rr: A_(((kb % 16)*4 + rr)*4, 4)
        I(f's_lshl_b32 s54, {sX}, 4'); I(f's_lshl_b32 s50, {sW}, 2'); I('s_add_u32 s54, s54, s50')
        I('s_mul_i32 s55, s54, 20480'); I(f's_add_u32 s55, s55, {HH}')
        def a3_load(kb):
            for rr in range(4):
                I(f's_add_u32 s51, s55, {rr*20480 + kb*1024}')
                I(f'buffer_load_dwordx4 {AF3(kb, rr)}, v4, {SWS}, s51 offen sc1', tag=('a3', kb))
        for kb in range(10): a3_load(kb)
        G3, CS3, RING3, STR = 64, 192, 224, 5
        stat_regs = list(range(6, 20)) + list(range(26, 48)) + [52, 53, 54, 55]
        stat_pairs = [stat_regs[2*k] for k in range(20)]
        for k in range(20): assert stat_regs[2*k+1] == stat_regs[2*k] + 1 and stat_regs[2*k] % 2 == 0
        def stats_load():
            I('v_lshlrev_b32 v56, 7, v3'); I('v_lshl_add_u32 v56, v2, 3, v56')
            I('s_mul_i32 s50, s54, 2560'); I(f's_add_u32 s50, s50, {ST}')
            for rr in range(4):
                I(f's_add_u32 s51, s50, {rr*2560}')
                for ii in range(5): I(f'buffer_load_dwordx2 {V(stat_pairs[rr*5+ii], 2)}, v56, {SWS}, s51 offen offset:{ii*512} sc1', tag='st3')
        for r in range(4): I(f'v_mov_b32 v{244+r}, 0x3f803f80')
        bset = set_br(False, sig(0)*8192)
        frags = []
        for kb in range(20):
            for t in range(8):
                f = {'pre': [], 'post': [], 'vm': []}
                def reads(slot, tag, kb=kb, t=t):
                    off = bset.off(sig(kb)*8192, 8192) + (t >> 2)*4096
                    I(f'ds_read_b64_tr_b16 {V(RING3+4*slot, 2)}, v{BR+(t & 3)} offset:{off}', tag=tag)
                    I(f'ds_read_b64_tr_b16 {V(RING3+4*slot+2, 2)}, v{BR+(t & 3)} offset:{off + 2048}', tag=tag)
                def mf(slot, kb=kb, t=t):
                    for rr in range(4):
                        d = V(G3 + (rr*8+t)*4, 4); I(f'{MF} {d}, {V(RING3+4*slot, 4)}, {AF3(kb, rr)}, {d if kb else 0}')
                    d = V(CS3 + t*4, 4); I(f'{MF} {d}, {V(RING3+4*slot, 4)}, {V(244, 4)}, {d if kb else 0}')
                f['reads'] = reads; f['mf'] = mf
                if t == 0: f['vm'].append(('a3', kb))
                if t == 1 and kb + 10 < 20: f['post'].append(lambda kb=kb: a3_load(kb + 10))
                if t == 4 and kb < 8: f['post'].append(lambda kb=kb: b3_dma([12 + kb]))
                if t == 4 and kb == 10: f['post'].append(stats_load)
                if t == 0 and kb == 7: f['pre'].append(lambda: (a.wait_vm(('b3', 11)), barrier()))
                if t == 0 and kb == 12: f['pre'].append(lambda: (a.wait_vm(('b3', 15)), barrier()))
                if t == 0 and kb == 16: f['pre'].append(lambda: (a.wait_vm(('b3', 19)), barrier()))
                frags.append(f)
        if exp == 'p3twice':
            I('s_mov_b32 s98, 0'); a.label('L_tw'); bset.cur0 = bset.cur
        gemm_loop(a, frags, 4)
        if exp == 'p3twice':
            I('s_memtime s[80:81]'); a.wait_lg(); I('s_mov_b32 s78, s80')
            bset.off(bset.cur0 + 70000); bset.off(bset.cur0 - 0) if False else None
            d = bset.cur0 - bset.cur
            for r in bset.regs: I(f'v_add_u32 v{r}, {d & 0xffffffff:#x}, v{r}')
            I('s_cmp_lg_u32 s98, 0'); I('s_cbranch_scc1 L_tw2')
            I('s_mov_b32 s74, s80'); I('s_mov_b32 s98, 1'); I('s_waitcnt vmcnt(0)'); I('s_branch L_tw')
            a.label('L_tw2'); nst[0] += 1
        else:
            stamp()
        barrier()
        a.wait_vm('st3')
        E = []
        e = E.append
        M3, R3 = 224, 228
        for rr in range(4):
            p = stat_pairs[rr*5:rr*5+5]
            for k in range(2):
                for ii in range(1, 5): e(f'v_add_f32 v{p[0]+k}, v{p[0]+k}, v{p[ii]+k}')
        for sw in ('v_permlane16_swap_b32', 'v_permlane32_swap_b32'):
            for rr in range(4):
                p = stat_pairs[rr*5:rr*5+5]
                for k in range(2): e(f'v_mov_b32 v{p[1]+k}, v{p[0]+k}')
            for rr in range(4):
                p = stat_pairs[rr*5:rr*5+5]
                for k in range(2): e(f'{sw} v{p[0]+k}, v{p[1]+k}')
            for rr in range(4):
                p = stat_pairs[rr*5:rr*5+5]
                for k in range(2): e(f'v_add_f32 v{p[0]+k}, v{p[0]+k}, v{p[1]+k}')
        for rr in range(4):
            p = stat_pairs[rr*5]
            e(f'v_mul_f32 v{M3+rr}, {inv:#x}, v{p}'); e(f'v_mul_f32 v{R3+rr}, {inv:#x}, v{p+1}')
        for rr in range(4): e(f'v_fma_f32 v{R3+rr}, -v{M3+rr}, v{M3+rr}, v{R3+rr}')
        for rr in range(4): e(f'v_max_f32 v{R3+rr}, 0, v{R3+rr}')
        for rr in range(4): e(f'v_add_f32 v{R3+rr}, {f2u(1e-5):#x}, v{R3+rr}')
        for rr in range(4): e(f'v_rsq_f32 v{R3+rr}, v{R3+rr}')
        import math
        c0 = -2.0*math.sqrt(2.0/math.pi)*math.log2(math.e); c1 = c0*0.044715
        e(f's_mov_b32 s52, {f2u(c1):#x}'); e(f'v_mov_b32 v232, {f2u(c0):#x}')
        e(f's_mul_i32 s56, s54, {54*1024}'); e(f's_lshl_b32 s57, {sI}, 11'); e('s_add_u32 s56, s56, s57'); e(f's_add_u32 s56, s56, {ACT}')
        TT = 6
        for rr in range(4):
            for hf in range(2):
                gs = [G3 + (rr*8 + 2*hf + tt)*4 + r for tt in range(2) for r in range(4)]
                cg = [CS3 + (2*hf + tt)*4 + r for tt in range(2) for r in range(4)]
                for k in range(8): e(f'v_fma_f32 v{gs[k]}, -v{M3+rr}, v{cg[k]}, v{gs[k]}')
                for k in range(8): e(f'v_fma_f32 v{gs[k]+16}, -v{M3+rr}, v{cg[k]+16}, v{gs[k]+16}')
                for k in range(8): e(f'v_mul_f32 v{gs[k]}, v{R3+rr}, v{gs[k]}')
                for k in range(8): e(f'v_mul_f32 v{gs[k]+16}, v{R3+rr}, v{gs[k]+16}')
                for k in range(8): e(f'v_mul_f32 v{TT+k}, v{gs[k]}, v{gs[k]}')
                for k in range(8): e(f'v_fma_f32 v{TT+k}, v{TT+k}, s52, v232')
                for k in range(8): e(f'v_mul_f32 v{TT+k}, v{TT+k}, v{gs[k]}')
                for k in range(8): e(f'v_exp_f32 v{TT+k}, v{TT+k}')
                for k in range(8): e(f'v_mul_f32 v{gs[k]}, v{gs[k]}, v{gs[k]+16}')
                for k in range(8): e(f'v_add_f32 v{TT+k}, 1.0, v{TT+k}')
                for k in range(8): e(f'v_rcp_f32 v{TT+k}, v{TT+k}')
                for k in range(8): e(f'v_mul_f32 v{gs[k]}, v{gs[k]}, v{TT+k}')
                pk = 236 + 4*((rr*2 + hf) & 1)
                for k in range(4): e(f'v_cvt_pk_bf16_f32 v{pk+k}, v{gs[2*k]}, v{gs[2*k+1]}')
                e(f's_add_u32 s57, s56, {rr*54*1024 + hf*1024}')
                e(f'buffer_store_dwordx4 {V(pk, 4)}, v4, {SWS}, s57 offen sc1')
        dm = b4_dma_list(range(40))
        step = max(1, (len(E) - 100) // len(dm))
        for n, ins in enumerate(E):
            I(ins)
            if n % step == step - 1 and dm: emit_group(dm.pop(0))
        for g in dm: emit_group(g)
        a.wait_vm(); barrier()
        stamp()
        arrive_and_poll(ctr(32), 0, poll=False)
        a.label('L_p4')
        a.vmq = []; a.lq = []
    if upto >= 4:
        arrive_and_poll(ctr(32), 27, arrive=False)
        a.vmq = []
        barrier()
        stamp()
        AF4 = lambda kk, rr: (A_((kk*3 + rr)*4, 4) if kk < 21 else V(168 + ((kk-21)*3 + rr)*4, 4))
        I(f's_mul_i32 s55, s53, {54*1024}'); I(f's_lshl_b32 s50, {sKH}, 10'); I('s_add_u32 s55, s55, s50'); I(f's_add_u32 s55, s55, {ACT}')
        def a4_load(kk):
            for rr in range(3):
                I(f's_add_u32 s51, s55, {rr*54*1024 + kk*2048}')
                I(f'buffer_load_dwordx4 {AF4(kk, rr)}, v4, {SWS}, s51 offen sc1', tag=('a4', kk))
        for kk in range(16): a4_load(kk)
        HR = 112
        def h_load():
            I('s_mul_i32 s56, s53, 20480'); I(f's_lshl_b32 s50, {sKH}, 10'); I('s_add_u32 s56, s56, s50'); I(f's_lshl_b32 s50, {sC2}, 11'); I('s_add_u32 s56, s56, s50'); I(f's_add_u32 s56, s56, {HH}')
            for rr in range(3):
                I(f's_add_u32 s50, s56, {rr*20480}')
                I(f'buffer_load_dwordx4 {V(HR+4*rr, 4)}, v4, {SWS}, s50 offen sc1', tag='hr')
        bset = set_br(True, sig(0)*8192)
        hooks = []
        for kk in range(11): hooks.append((kk, 1, 'post', (lambda kk=kk: a4_load(kk + 16))))
        def refill():
            barrier()
            for g in b4_dma_list(range(40, 54)): emit_group(g)
        hooks.append((7, 0, 'post', refill))
        hooks.append((12, 0, 'post', h_load))
        hooks.append((20, 0, 'pre', lambda: (a.wait_vm(('b4', 53)), barrier())))
        split_gemm(27, AF4, 'a4', lambda kk: sig(kk % 20)*8192, bset, hooks)
        stamp()
        exchange()
        a.wait_vm('hr')
        T0 = 164
        I(f's_mul_i32 s54, s53, {16*1280}'); I(f's_lshl_b32 s50, {sC2}, 7'); I('s_add_u32 s54, s54, s50'); I(f's_lshl_b32 s50, {sKH}, 6'); I('s_add_u32 s54, s54, s50')
        I('v_mul_u32_u24 v46, 1280, v2'); I('v_and_b32 v60, 1, v3'); I('v_lshl_add_u32 v46, v60, 5, v46'); I('v_lshrrev_b32 v60, 1, v3'); I('v_lshl_add_u32 v46, v60, 4, v46')
        for rr in range(3):
            b = ACC + rr*16
            for k in range(4):
                x = HR + 4*rr + k
                I(f'v_lshlrev_b32 v{T0+2*k}, 16, v{x}'); I(f'v_and_b32 v{T0+2*k+1}, 0xffff0000, v{x}')
            for k in range(8): I(f'v_add_f32 v{b+k}, v{b+k}, v{T0+k}')
            o = T0 + 8 + 4*rr
            for k in range(4): I(f'v_cvt_pk_bf16_f32 v{o+k}, v{b+2*k}, v{b+2*k+1}')
            I(f'v_permlane16_swap_b32 v{o}, v{o+2}'); I(f'v_permlane16_swap_b32 v{o+1}, v{o+3}')
            I(f's_add_u32 s50, s54, {rr*16*1280}')
            I(f'buffer_store_dwordx4 {V(o, 4)}, v46, {SOUT}, s50 offen')
    a.label('L_fin')
    if stamps:
        nst[0] = 15; stamp()
        I(f's_cmp_lg_u32 {sW}, 0'); I('s_cbranch_scc1 L_end')
        I('s_lshl_b32 s50, s2, 6'); I(f's_add_u32 s50, s50, {TS}'); I('v_mov_b32 v60, 0')
        for k in range(16): I(f'v_mov_b32 v{64+k}, s{64+k}')
        I('s_mov_b64 exec, 1')
        for k in range(4): I(f'buffer_store_dwordx4 {V(64+4*k, 4)}, v60, {SWS}, s50 offen offset:{16*k}')
    I('s_waitcnt vmcnt(0)')
    a.label('L_end')
    I('s_endpgm')
    a.raw('.section .rodata,"a"\n.p2align 6')
    a.raw(f'.amdhsa_kernel {NAME}_kernel')
    a.raw('  .amdhsa_next_free_vgpr 512\n  .amdhsa_next_free_sgpr 102\n  .amdhsa_accum_offset 256\n  .amdhsa_group_segment_fixed_size 0')
    a.raw('  .amdhsa_kernarg_size 80\n  .amdhsa_user_sgpr_count 2\n  .amdhsa_user_sgpr_kernarg_segment_ptr 1\n  .amdhsa_system_sgpr_workgroup_id_x 1\n.end_amdhsa_kernel')
    sys.stderr.write(f'instrs {a.nins} nops {a.nops} auto_vm {a.auto_vm} auto_lg {a.auto_lg}\n')
    return a.text()

if __name__ == '__main__':
    out = sys.argv[1]
    st = 'clk' if 'clk' in sys.argv[2:] else ('stamps' in sys.argv[2:])
    ex = [x[4:] for x in sys.argv[2:] if x.startswith('exp=')]
    open(out, 'w').write(gen(stamps=st, exp=ex[0] if ex else ''))
```

```python
import re

_REG = re.compile(r'^(-|\|)?(abs\()?([vas])(\d+|\[(\d+):(\d+)\])\)?\|?$')
TRANS = ('v_exp_f32', 'v_log_f32', 'v_rcp_f32', 'v_rsq_f32', 'v_sqrt_f32', 'v_sin_f32', 'v_cos_f32')

def regs_of(op):
    op = op.strip()
    if op in ('vcc', 'exec/', 'exec', 'm0', 'scc'):
        return [op]
    if op in ('vcc_lo', 'vcc_hi'):
        return ['vcc']
    m = _REG.match(op)
    if not m:
        return []
    k = m.group(3)
    if m.group(5) is not None:
        return [f'{k}{i}' for i in range(int(m.group(5)), int(m.group(6)) + 1)]
    return [f'{k}{m.group(4)}']

def split_ops(rest):
    out, cur, d = [], '', 0
    for ch in rest:
        if ch == '[': d += 1
        if ch == ']': d -= 1
        if ch == ',' and d == 0:
            out.append(cur.strip()); cur = ''
        else:
            cur += ch
    if cur.strip(): out.append(cur.strip())
    mods = ''
    if out:
        parts = out[-1].split(None, 1)
        out[-1] = parts[0]
        mods = parts[1] if len(parts) > 1 else ''
    return out, mods

class Asm:
    def __init__(self):
        self.lines = []
        self.pos = 0
        self.w = {}
        self.mfma_c_read = {}
        self.mfma_d = {}
        self.store_data = {}
        self.vmq = []
        self.lq = []
        self.nins = 0
        self.nops = 0
        self.auto_vm = 0
        self.issued = set()
        self.auto_lg = 0

    def raw(self, s):
        self.lines.append(s)

    def comment(self, s):
        self.lines.append('; ' + s)

    def _nop(self, n):
        while n > 0:
            k = min(n, 16)
            self.lines.append(f's_nop {k-1}')
            self.pos += k; n -= k; self.nops += 1

    def flush_hazards(self):
        need = 0
        for r, (p, k) in self.w.items():
            d = {'mfma': 8, 'valu': 5 if (r[0] == 's' or r in ('vcc', 'exec')) else 2, 'trans': 2, 'salu': 1 if r == 'm0' else 0}[k]
            need = max(need, p + 1 + d - self.pos)
        for r, p in self.mfma_c_read.items(): need = max(need, p + 1 + 3 - self.pos)
        for r, p in self.store_data.items(): need = max(need, p + 1 + 2 - self.pos)
        if need > 0: self._nop(need)

    def label(self, name):
        self.lines.append(name + ':')

    def I(self, text, tag=None):
        text = text.strip()
        sp = text.split(None, 1)
        opc = sp[0]
        if opc.startswith(('buffer_', 'global_')) and len(self.vmq) >= 63:
            self.I('s_waitcnt vmcnt(62)'); self.vmq = self.vmq[-62:]; self.auto_vm += 1
        if opc.startswith('ds_') and len(self.lq) >= 15:
            if 'SMEM' in self.lq:
                self.I('s_waitcnt lgkmcnt(0)'); self.lq = []
            else:
                self.I('s_waitcnt lgkmcnt(14)'); self.lq = self.lq[-14:]
            self.auto_lg += 1
        ops, mods = split_ops(sp[1]) if len(sp) > 1 else ([], '')
        R = [regs_of(o) for o in ops]
        need = 0
        def req(reg, kinds, n):
            nonlocal need
            e = self.w.get(reg)
            if e and e[1] in kinds:
                need = max(need, e[0] + 1 + n - self.pos)
        dst, src = [], []
        kind = None
        is_dpp = ('row_' in mods) or ('quad_perm' in mods) or ('wave_' in mods)
        if opc.startswith('v_mfma'):
            kind = 'mfma'
            dst = R[0]; A, B, C = R[1], R[2], R[3]
            for r in A + B + C: req(r, ('valu', 'trans'), 2)
            for r in A + B: req(r, ('mfma',), 8)
            for r in C:
                e = self.mfma_d.get(r)
                if e and self.w.get(r, (0, ''))[1] == 'mfma':
                    if e[1] != tuple(C): need = max(need, e[0] + 1 + 6 - self.pos)
            for r in dst:
                e = self.mfma_d.get(r)
                if e and self.w.get(r, (0, ''))[1] == 'mfma' and tuple(C) != e[1]:
                    need = max(need, e[0] + 1 + 6 - self.pos)
            req('exec', ('valu',), 4)
            src = A + B + C
        elif opc.startswith('v_'):
            kind = 'trans' if opc.replace('_e32', '').replace('_e64', '') in TRANS else 'valu'
            base = opc
            if base.startswith('v_cmp'):
                dst = R[0]; src = sum(R[1:], [])
            elif base.startswith('v_permlane') and 'swap' in base:
                dst = R[0] + R[1]; src = R[0] + R[1]
                for r in src: req(r, ('valu', 'trans'), 2)
            elif '_co_' in base:
                dst = R[0] + R[1]; src = sum(R[2:], [])
            else:
                dst = R[0]; src = sum(R[1:], [])
                if base.startswith(('v_fmac', 'v_mac', 'v_dot2c', 'v_pk_fmac')): src = src + R[0]
                if base.startswith('v_cndmask') and len(ops) == 3: src = src + ['vcc']
            if base.startswith(('v_readfirstlane', 'v_readlane')):
                for r in R[1]: req(r, ('valu', 'trans'), 1)
                if len(R) > 2:
                    for r in R[2]: req(r, ('valu',), 4)
            if is_dpp:
                for r in src: req(r, ('valu', 'trans'), 2)
                req('exec', ('valu',), 5)
                src = src + dst
            for r in src:
                if r[0] == 's' or r == 'vcc': req(r, ('valu',), 2)
                if kind != 'trans': req(r, ('trans',), 1)
                else: req(r, ('trans',), 1)
                req(r, ('mfma',), 8)
            for r in dst:
                req(r, ('mfma',), 8)
                p = self.mfma_c_read.get(r)
                if p is not None: need = max(need, p + 1 + 3 - self.pos)
                p = self.store_data.get(r)
                if p is not None: need = max(need, p + 1 + 2 - self.pos)
        elif opc.startswith('ds_'):
            kind = 'ds'
            if opc.startswith(('ds_read', 'ds_bpermute', 'ds_permute', 'ds_swizzle')):
                dst = R[0]; src = sum(R[1:], [])
            else:
                src = sum(R, [])
            for r in src + dst: req(r, ('mfma',), 8)
            for r in dst:
                p = self.store_data.get(r)
                if p is not None: need = max(need, p + 1 + 1 - self.pos)
        elif opc.startswith(('buffer_', 'global_')):
            kind = 'vmem'
            lds = re.search(r'\blds\b', mods) is not None
            if opc.startswith('buffer_load') and not lds:
                dst = R[0]; src = sum(R[1:], [])
            else:
                src = sum(R, [])
            if lds: req('m0', ('salu',), 1)
            for r in src:
                if r[0] == 's' or r == 'vcc': req(r, ('valu',), 5)
            for r in src + dst: req(r, ('mfma',), 8)
            for r in dst:
                p = self.store_data.get(r)
                if p is not None: need = max(need, p + 1 + 1 - self.pos)
        elif opc.startswith('s_'):
            kind = 'salu'
            if opc.startswith(('s_cmp', 's_cbranch', 's_branch', 's_waitcnt', 's_barrier', 's_nop', 's_sleep', 's_endpgm', 's_setprio', 's_bitcmp')):
                dst = []
                src = sum(R, [])
            else:
                dst = R[0] if R else []
                src = sum(R[1:], [])
                if 'saveexec' in opc: dst = dst + ['exec']
            for r in src:
                req(r, ('valu',), 1)
            if opc.startswith('s_cbranch_vcc'): req('vcc', ('valu',), 2)
            if opc.startswith(('s_cbranch', 's_branch')):
                if need > 0: self._nop(need); need = 0
                self.flush_hazards()
        else:
            raise ValueError('unknown instr ' + text)
        if need > 0: self._nop(need)
        self.lines.append(text)
        p = self.pos
        if opc == 's_nop':
            self.pos += int(ops[0]) + 1
        else:
            self.pos += 1
        self.nins += 1
        wk = kind if kind in ('valu', 'trans', 'mfma', 'salu') else 'mem'
        for r in dst:
            if wk == 'mem': self.w.pop(r, None)
            else: self.w[r] = (p, wk)
            if wk != 'mfma': self.mfma_d.pop(r, None)
        if kind == 'mfma':
            for r in dst: self.mfma_d[r] = (p, tuple(dst))
            for r in R[3]: self.mfma_c_read[r] = p
        if kind == 'vmem' and ('store' in opc or 'atomic' in opc) and ('x3' in opc or 'x4' in opc):
            for r in R[0]: self.store_data[r] = p
        if kind == 'vmem': self.vmq.append(tag); self.issued.add(('vm', tag))
        if kind == 'ds': self.lq.append(tag); self.issued.add(('lg', tag))
        if opc.startswith(('s_load', 's_memtime', 's_memrealtime', 's_buffer_load')): self.lq.append('SMEM')
        if self.nins % 64 == 0:
            lim = self.pos - 24
            self.w = {k: v for k, v in self.w.items() if v[0] >= lim}
            self.mfma_c_read = {k: v for k, v in self.mfma_c_read.items() if v >= lim}
            self.store_data = {k: v for k, v in self.store_data.items() if v >= lim}

    def wait_vm(self, tag=None):
        if tag is None:
            n = 0
        else:
            assert ('vm', tag) in self.issued, ('vm tag never issued', tag)
            if tag not in self.vmq: return
            idx = len(self.vmq) - 1 - self.vmq[::-1].index(tag)
            n = len(self.vmq) - 1 - idx
        n = min(n, 63)
        self.I(f's_waitcnt vmcnt({n})')
        self.vmq = self.vmq[len(self.vmq) - n:] if n else []

    def wait_lg(self, tag=None):
        if tag is None or 'SMEM' in self.lq:
            n = 0
        else:
            assert ('lg', tag) in self.issued, ('lg tag never issued', tag)
            if tag not in self.lq: return
            idx = len(self.lq) - 1 - self.lq[::-1].index(tag)
            n = len(self.lq) - 1 - idx
        n = min(n, 15)
        self.I(f's_waitcnt lgkmcnt({n})')
        self.lq = self.lq[len(self.lq) - n:] if n else []

    def text(self):
        return '\n'.join(self.lines) + '\n'
```

```python
import sys, math, struct
sys.path.insert(0, 'gen')
from asmlib import Asm

NAME = 'sequential_preLN__linear_attn_block__geglu_ffn__prompt'
FLG = 0; CSB = 0x8000; PART = 0x10000; OO = 0x200000; HH = 0x500000; ST = 0x800000; ACT = 0x900000; TS = 0x1000000; WS_SIZE = 0x1100000
XR = 102400; KVI = 81920; STAT = 98304; EXB = 81920
def f2u(x): return struct.unpack('<I', struct.pack('<f', x))[0]
LOG2E = f2u(math.log2(math.e))
SX, SQKV, SWO, SWG, SWU, SWD, SOUT, SWS, SDBG = 's[4:7]', 's[8:11]', 's[12:15]', 's[16:19]', 's[20:23]', 's[24:27]', 's[28:31]', 's[32:35]', 's[36:39]'
sW, sX, sI, sRB, sG, sC2, sRG, sRH, sKH = 's40', 's41', 's42', 's43', 's44', 's45', 's46', 's47', 's48'
def V(b, n=1): return f'v{b}' if n == 1 else f'v[{b}:{b+n-1}]'
def A_(b, n=1): return f'a{b}' if n == 1 else f'a[{b}:{b+n-1}]'
def P(b):
    assert b % 2 == 0
    return f'v[{b}:{b+1}]'
MF = 'v_mfma_f32_16x16x32_bf16'
POLL_LIMIT = 400000
NEG0 = 'neg_lo:[1,0,0] neg_hi:[1,0,0]'

class AddrSet:
    def __init__(self, a, regs, cur): self.a, self.regs, self.cur = a, regs, cur
    def off(self, absolute, span=4096):
        if not (0 <= absolute - self.cur and absolute - self.cur + span <= 65536):
            d = absolute - self.cur
            for r in self.regs: self.a.I(f'v_add_u32 v{r}, {d & 0xffffffff:#x}, v{r}')
            self.cur = absolute
        return absolute - self.cur

def emit(a, g):
    for x in g:
        if callable(x): x()
        elif isinstance(x, tuple): a.I(x[0], tag=x[1])
        else: a.I(x)

def gemm_loop(a, frags, D, bg=None, rate=lambda i: 1):
    n = len(frags); bg = list(bg or [])
    def do_reads(k):
        f = frags[k]
        return [lambda f=f: [h() for h in f.get('pre', [])]] + f['reads'](k % (D + 1), ('f', k))
    for k in range(min(D, n)):
        for c in do_reads(k): c()
    for i in range(n):
        f = frags[i]
        for t in f.get('vm', []):
            assert not any(any(isinstance(x, tuple) and x[1] == t for x in g) for _, g in bg), ('not issued', t)
            a.wait_vm(t)
        a.wait_lg(('f', i))
        ms = f['mf'](i % (D + 1))
        fill = []
        if i + D < n:
            r = do_reads(i + D)
            fill.append(r[0:2]); fill.append(r[2:3])
        for _ in range(rate(i)):
            for q, (e, g) in enumerate(bg):
                if e <= i:
                    fill.append([lambda g=g: emit(a, g)]); bg.pop(q); break
        for k, m in enumerate(ms):
            a.I(m)
            if k < len(fill):
                for c in fill[k]: c()
        for fl in fill[len(ms):]:
            for c in fl: c()
        for h in f.get('post', []): h()
    return [g for _, g in bg]

def gen(stamps=False, cfg=None):
    cfg = cfg or {}
    a = Asm(); I = a.I
    nst = [0]
    def stamp(k=None):
        if k is None:
            k = nst[0]; nst[0] += 1
            if cfg.get('p1probe') and k >= 6: return
        if not stamps: return
        I(('s_memtime' if stamps == 'clk' else 's_memrealtime') + ' s[80:81]'); a.wait_lg(); I(f's_mov_b32 s{64+k}, s80')
    def barrier(): I('s_barrier')
    lab = [0]
    def newlab(p='L'):
        lab[0] += 1; return f'{p}{lab[0]}'
    def w0(body):
        skip = newlab('L_nw')
        q = list(a.vmq)
        I(f's_cmp_lg_u32 {sW}, 0'); I(f's_cbranch_scc1 {skip}')
        body()
        a.flush_hazards()
        a.label(skip)
        a.vmq = q
    def arrive(setup):
        def b():
            setup()
            I('v_mov_b32 v60, 0'); I('v_mov_b32 v61, 1')
            I('s_mov_b64 exec, 1')
            I(f'buffer_atomic_add v61, v60, {SWS}, s50 offen sc1')
            I('s_mov_b64 exec, -1')
        w0(b)
    def poll_body(setup, expect):
        setup()
        lp, done = newlab('L_poll'), newlab('L_pd')
        I('v_mov_b32 v60, 0'); I(f's_mov_b32 s51, {POLL_LIMIT}')
        a.label(lp)
        I(f'buffer_load_dword v61, v60, {SWS}, s50 offen sc1')
        I('s_waitcnt vmcnt(0)')
        I('v_readfirstlane_b32 s52, v61')
        I(f's_cmp_ge_u32 s52, {expect}'); I(f's_cbranch_scc1 {done}')
        I('s_sub_u32 s51, s51, 1'); I('s_cmp_lg_u32 s51, 0'); I(f's_cbranch_scc1 {lp}')
        a.label(done)
    def poll(setup, expect): w0(lambda: poll_body(setup, expect))
    def ctr(base): return lambda: (I(f's_lshl_b32 s50, {sX}, 8'), I(f's_add_u32 s50, s50, {base*256}'))

    a.raw('; @launch grid=(256,1,1) block=(256,1,1) lds=163840')
    a.raw('.amdgcn_target "amdgcn-amd-amdhsa--gfx950"\n.text')
    a.raw(f'.globl {NAME}_kernel\n.p2align 8\n.type {NAME}_kernel,@function\n{NAME}_kernel:')
    I('s_cmp_ge_u32 s2, 256'); I('s_cbranch_scc1 L_end')
    I('s_load_dwordx16 s[64:79], s[0:1], 0'); I('s_load_dwordx4 s[80:83], s[0:1], 64')
    I('v_and_b32 v1, 63, v0'); I('v_and_b32 v2, 15, v0'); I('v_bfe_u32 v3, v0, 4, 2'); I('v_lshlrev_b32 v4, 4, v1')
    I('v_lshrrev_b32 v60, 6, v0'); I(f'v_readfirstlane_b32 {sW}, v60')
    I(f's_and_b32 {sX}, s2, 7'); I(f's_lshr_b32 {sI}, s2, 3'); I(f's_lshr_b32 {sRB}, {sI}, 4'); I(f's_and_b32 {sG}, {sI}, 15')
    I('v_and_b32 v60, 7, v1'); I('v_xor_b32 v60, v60, v3'); I('v_lshlrev_b32 v60, 4, v60')
    I('v_lshrrev_b32 v61, 3, v1'); I('v_mul_u32_u24 v5, 1280, v61'); I('v_add_u32 v5, v5, v60'); I('v_xor_b32 v6, 64, v5')
    I('v_mov_b32 v57, 1280'); I('v_mov_b32 v58, 2480')
    for t in range(5):
        I(f'v_add_u32 v60, {64*t}, v1')
        I('v_mul_u32_u24 v61, 6554, v60'); I('v_lshrrev_b32 v61, 16, v61')
        I('v_mul_u32_u24 v62, 10, v61'); I('v_sub_u32 v62, v60, v62')
        I('v_cmp_lt_u32 vcc, 4, v62')
        I('v_and_b32 v63, 0x13, v61'); I('v_and_b32 v59, 4, v61'); I('v_lshl_or_b32 v63, v59, 1, v63')
        I('v_bfe_u32 v59, v61, 3, 1'); I('v_lshl_or_b32 v63, v59, 2, v63')
        I('v_cndmask_b32 v59, v57, v58, vcc'); I('v_lshl_add_u32 v59, v62, 4, v59')
        I(f'v_mul_u32_u24 v{9+t}, 3840, v63'); I(f'v_add_u32 v{9+t}, v{9+t}, v59')
    I(f's_lshl_b32 s50, {sX}, 8'); I(f's_lshl_b32 s51, {sRB}, 7'); I('s_add_u32 s50, s50, s51'); I(f's_lshl_b32 s51, {sW}, 5'); I('s_add_u32 s50, s50, s51')
    I('s_mul_i32 s53, s50, 1280')
    for q in range(1, 4): I(f's_add_u32 s{53+q}, s53, {q*8*1280}')
    I(f's_mul_i32 s57, {sW}, 12288'); I(f's_add_u32 s57, s57, {XR}')
    I(f's_mul_i32 s58, {sW}, {32*3840}'); I(f's_mul_i32 s50, {sG}, 80'); I('s_add_u32 s58, s58, s50')
    I(f's_mul_i32 s59, {sW}, 5120')
    a.wait_lg()
    def srd(dst, lo, size):
        I(f's_mov_b32 s{dst}, s{lo}'); I(f's_mov_b32 s{dst+1}, s{lo+1}'); I(f's_mov_b32 s{dst+2}, {size}'); I(f's_mov_b32 s{dst+3}, 0x20000')
    srd(4, 64, 2048*1280); srd(8, 66, 640*3840); srd(32, 82, WS_SIZE); srd(36, 80, 256)
    I(f's_or_b32 s50, s2, {sW}'); I('s_cmp_lg_u32 s50, 0'); I('s_cbranch_scc1 L_noinit')
    I('v_lshlrev_b32 v60, 8, v1'); I('v_mov_b32 v61, 0')
    I(f'buffer_store_dword v61, v60, {SWS}, 0 offen sc1')
    I('s_waitcnt vmcnt(0)')
    I('v_mov_b32 v60, 0'); I('v_mov_b32 v61, 1')
    I('s_mov_b64 exec, 1')
    I(f'buffer_store_dword v61, v60, {SDBG}, 0 offen sc1')
    I('s_mov_b64 exec, -1')
    a.label('L_noinit')
    a.vmq = []
    def x_grp(c):
        return [[f's_add_u32 m0, s57, {((c % 3)*4096 + q*1024 - c*128) & 0xffffffff:#x}', 's_nop 0',
                 (f'buffer_load_dwordx4 v{5 + (q & 1)}, {SX}, s{53+q} offen offset:{c*128} lds', ('x', c))] for q in range(4)]
    def b1_grp(s):
        return [[f's_add_u32 m0, s59, {s*20480 + t*1024}', f's_add_u32 s50, s58, {s*128*3840}',
                 (f'buffer_load_dwordx4 v{9+t}, {SQKV}, s50 offen lds', ('b1', s))] for t in range(5)]
    for g in x_grp(0) + x_grp(1) + b1_grp(0): emit(a, g)
    srd(12, 68, 640*1280); srd(16, 72, 640*3456); srd(20, 74, 640*3456); srd(24, 76, 1728*1280); srd(28, 78, 2048*1280)
    stamp()
    def touch(srdn, per_wave, base_setup):
        return [base_setup, f's_mul_i32 s51, {sW}, {per_wave}', 's_add_u32 s50, s50, s51', 's_lshl_b32 s50, s50, 7',
                f's_mov_b64 exec, {(1 << per_wave) - 1:#x}', (f'buffer_load_dword v255, v254, {srdn}, s50 offen', 'touch'), 's_mov_b64 exec, -1']
    I('v_lshlrev_b32 v254, 7, v1')
    if cfg.get('touch', 1):
        emit(a, touch(SQKV, 19, 's_mul_i32 s50, s2, 75'))
    for g in x_grp(2) + b1_grp(1): emit(a, g)
    if cfg.get('touch', 1):
        emit(a, touch(SWO, 7, 's_mul_i32 s50, s2, 25'))
    I('v_lshrrev_b32 v60, 1, v2'); I('v_xor_b32 v60, v60, v3'); I('v_lshlrev_b32 v60, 4, v60'); I('v_lshl_add_u32 v7, v2, 7, v60')
    I('v_add_u32 v7, s57, v7'); I('v_xor_b32 v8, 64, v7')
    I('v_lshrrev_b32 v58, 2, v2'); I('v_and_b32 v60, 1, v3'); I('v_lshl_add_u32 v58, v60, 2, v58')
    I('v_lshrrev_b32 v60, 1, v3'); I('v_lshl_add_u32 v58, v60, 4, v58'); I('v_and_b32 v59, 3, v2')
    I('v_mul_u32_u24 v60, 160, v58'); I('v_lshl_add_u32 v14, v59, 3, v60')
    I('v_and_b32 v61, 1, v59'); I('v_mul_u32_u24 v61, 40, v61'); I('v_lshrrev_b32 v62, 1, v59'); I('v_mul_u32_u24 v62, 80, v62')
    I('v_add_u32 v15, 112, v60'); I('v_add_u32 v15, v15, v61'); I('v_sub_u32 v15, v15, v62')
    I('v_mul_u32_u24 v60, 96, v58'); I(f'v_add_u32 v60, {XR}, v60'); I('v_lshl_add_u32 v16, v59, 3, v60')
    I('v_cmp_eq_u32 vcc, 3, v59'); I('v_mov_b32 v61, 32'); I('v_mov_b32 v62, 72'); I('v_cndmask_b32 v61, v61, v62, vcc'); I('v_add_u32 v17, v60, v61')
    for t in range(3):
        I(f'v_add_u32 v60, {64*t}, v1')
        I('v_mul_u32_u24 v61, 10923, v60'); I('v_lshrrev_b32 v61, 16, v61')
        I('v_mul_u32_u24 v62, 6, v61'); I('v_sub_u32 v62, v60, v62'); I('v_min_u32 v62, 4, v62')
        I('v_and_b32 v63, 0x13, v61'); I('v_and_b32 v57, 4, v61'); I('v_lshl_or_b32 v63, v57, 1, v63')
        I('v_bfe_u32 v57, v61, 3, 1'); I('v_lshl_or_b32 v63, v57, 2, v63')
        I(f'v_mul_u32_u24 v{18+t}, 3840, v63'); I(f'v_lshl_add_u32 v{18+t}, v62, 4, v{18+t}')
    I('v_and_b32 v57, 7, v1'); I('v_lshlrev_b32 v60, 1, v3'); I('v_xor_b32 v57, v57, v60'); I('v_lshlrev_b32 v57, 4, v57')
    I(f's_lshl_b32 s50, {sW}, 3'); I('v_lshrrev_b32 v56, 3, v1'); I('v_add_u32 v56, s50, v56')
    I('v_mul_u32_u24 v21, 1280, v56'); I('v_add_u32 v21, v21, v57')
    I('v_mul_u32_u24 v22, 3456, v56'); I('v_add_u32 v22, v22, v57')
    I(f's_lshr_b32 s50, {sW}, 1'); I(f's_mul_i32 s50, s50, {4*1280}'); I('v_add_u32 v23, s50, v21')
    I('v_bfe_u32 v60, v56, 2, 2'); I('v_mul_u32_u24 v60, 40, v60'); I('v_and_b32 v61, 3, v56'); I('v_add_u32 v60, v60, v61')
    I('v_lshrrev_b32 v61, 4, v56'); I('v_mul_u32_u24 v61, 20, v61'); I('v_add3_u32 v60, v60, v61, 16')
    I('v_mul_u32_u24 v24, 1280, v60'); I('v_add_u32 v24, v24, v57')
    I('v_lshrrev_b32 v60, 2, v2'); I('v_lshl_add_u32 v61, v3, 2, v60'); I('v_lshlrev_b32 v25, 7, v61')
    I('v_bfe_u32 v61, v61, 1, 2'); I('v_lshl_or_b32 v25, v61, 5, v25'); I('v_lshl_or_b32 v25, v59, 3, v25')
    I('v_mul_u32_u24 v46, 1280, v2'); I('v_and_b32 v60, 1, v3'); I('v_lshl_add_u32 v46, v60, 5, v46'); I('v_lshrrev_b32 v60, 1, v3'); I('v_lshl_add_u32 v46, v60, 4, v46')
    I('v_lshlrev_b32 v32, 4, v0')
    I(f's_mul_i32 {sRG}, {sI}, 26'); I(f's_lshr_b32 {sRG}, {sRG}, 8')
    I(f's_mul_i32 s50, {sRG}, 10'); I(f's_sub_u32 {sC2}, {sI}, s50')
    I(f's_lshr_b32 {sRH}, {sW}, 1'); I(f's_and_b32 {sKH}, {sW}, 1')
    I(f's_lshl_b32 s49, {sX}, 4'); I(f's_mul_i32 s50, {sRG}, 5'); I('s_add_u32 s49, s49, s50'); I(f's_mul_i32 s50, {sRH}, 3'); I('s_add_u32 s49, s49, s50')
    I(f's_mul_i32 s60, s49, {16*1280}'); I(f's_lshl_b32 s50, {sC2}, 7'); I('s_add_u32 s60, s60, s50'); I(f's_lshl_b32 s50, {sKH}, 6'); I('s_add_u32 s60, s60, s50')
    I(f's_lshl_b32 s61, {sW}, 10'); I(f's_lshl_b32 s62, {sC2}, 7'); I(f's_lshl_b32 s63, {sI}, 7')
    I(f's_cmp_eq_u32 {sW}, 2'); I('s_cbranch_scc1 L_im2'); I(f's_cmp_eq_u32 {sW}, 3'); I('s_cbranch_scc1 L_im3')
    I('v_add_u32 v26, s61, v4')
    I(f's_mul_i32 s50, {sW}, {2048+8}'); I(f's_add_u32 s50, s50, {KVI}'); I('v_add_u32 v27, s50, v4')
    I('s_branch L_imd')
    a.label('L_im2')
    I('v_lshl_add_u32 v60, v3, 4, v2'); I('v_add_u32 v60, 32, v60')
    I('v_lshrrev_b32 v61, 2, v2'); I('v_lshl_add_u32 v61, v61, 4, v59'); I('v_and_b32 v62, 1, v3'); I('v_lshl_add_u32 v61, v62, 2, v61')
    I('v_cmp_gt_u32 vcc, 2, v3'); I('v_cndmask_b32 v60, v61, v60, vcc'); I('v_lshlrev_b32 v60, 4, v60')
    I('v_add_u32 v61, 2, v3'); I('v_lshl_add_u32 v26, v61, 10, v60')
    I('v_lshlrev_b32 v61, 11, v3'); I('v_add_u32 v61, 1024, v61')
    I('v_lshlrev_b32 v62, 3, v62'); I('v_add_u32 v62, 4096, v62')
    I('v_cndmask_b32 v61, v62, v61, vcc'); I(f'v_add_u32 v61, {KVI}, v61'); I('v_add_u32 v27, v61, v60')
    I('s_branch L_imd')
    a.label('L_im3')
    I('v_bfe_u32 v61, v2, 2, 1')
    I('v_lshl_add_u32 v60, v61, 4, v2'); I('v_add_u32 v60, 32, v60')
    I('v_mul_u32_u24 v62, 17, v61'); I('v_lshl_add_u32 v62, v59, 2, v62'); I('v_add_u32 v62, 32, v62')
    I('v_cmp_gt_u32 vcc, 8, v2'); I('v_cndmask_b32 v60, v62, v60, vcc')
    I('v_mov_b32 v61, 9216'); I('v_mov_b32 v62, 6144'); I('v_cndmask_b32 v61, v61, v62, vcc')
    I('v_mov_b32 v62, 7168'); I('v_mov_b32 v63, 5120'); I('v_cndmask_b32 v62, v62, v63, vcc')
    I('v_lshrrev_b32 v63, 2, v2'); I('v_lshlrev_b32 v63, 4, v63'); I('v_lshl_add_u32 v63, v59, 2, v63')
    I('v_lshrrev_b32 v57, 1, v3'); I('v_add_u32 v63, v63, v57')
    I('v_add_u32 v56, 6, v3'); I('v_lshlrev_b32 v56, 10, v56')
    I('v_lshlrev_b32 v57, 3, v57'); I('v_add_u32 v57, 6144, v57')
    I('v_cmp_eq_u32 vcc, 0, v3')
    I('v_cndmask_b32 v60, v63, v60, vcc'); I('v_cndmask_b32 v61, v56, v61, vcc'); I('v_cndmask_b32 v62, v57, v62, vcc')
    I('v_lshlrev_b32 v60, 4, v60'); I('v_add_u32 v26, v61, v60'); I('v_add_u32 v27, v62, v60'); I(f'v_add_u32 v27, {KVI}, v27')
    I('v_cmp_eq_u32 vcc, 3, v3'); I(f'v_mov_b32 v60, {KVI+8192}'); I('v_lshl_add_u32 v60, v2, 3, v60')
    I('v_cndmask_b32 v27, v27, v60, vcc'); I('v_cndmask_b32 v26, v26, v4, vcc')
    a.flush_hazards()
    a.label('L_imd')
    I('v_lshlrev_b32 v60, 2, v3')
    for r in range(4):
        I(f'v_add_u32 v61, {r}, v60'); I(f'v_cmp_eq_u32 s[{84+2*r}:{85+2*r}], v61, v2')
    I('v_cmp_lt_u32 s[92:93], 7, v2'); I('v_cmp_eq_u32 s[94:95], 0, v2')
    ONES = 140
    for r in range(4): I(f'v_mov_b32 v{ONES+r}, 0x3f803f80')
    I(f's_mov_b32 s96, {LOG2E:#x}'); I(f's_mov_b32 s97, {LOG2E:#x}'); I(f's_mov_b32 s98, {f2u(1e-6):#x}'); I(f's_mov_b32 s99, {f2u(1e-6):#x}')

    ACC, CS, RS, SQ, RING = 64, 104, 124, 132, 144
    D = 4
    XF = lambda kb, rt: A_((kb*2 + rt)*4, 4)
    b1a = AddrSet(a, [14, 15], 0)
    tiles1 = [(14, 0), (14, 40), (15, 0), (14, 80), (14, 120)]
    def bq_grps():
        return [[f's_add_u32 m0, s100, {n*12288 + t*1024}', f's_add_u32 s50, s58, {n*128*3840}',
                 (f'buffer_load_dwordx4 v{18+t}, {SQKV}, s50 offen lds', 'bq')] for n in range(5) for t in range(3)]
    I(f's_mul_i32 s100, {sW}, 3072'); I(f's_add_u32 s100, s100, {XR}')
    frags = []
    for kb in range(20):
        for ti, (ar, o) in enumerate(tiles1):
            f = {'pre': [], 'post': []}
            if ti == 0 and kb % 2 == 0:
                def pre_x(c=kb // 2):
                    a.wait_vm(('x', c))
                    if c == 0 and cfg.get('p1probe'): stamp(6)
                    if c == 9 and cfg.get('p1probe'): stamp(12)
                    for hh in range(2):
                        for rt in range(2):
                            I(f'ds_read_b128 {XF(2*c+hh, rt)}, v{7+hh} offset:{(c % 3)*4096 + rt*2048}', tag=('xr', c))
                f['pre'].append(pre_x)
                if kb == 18: f['post'].append(barrier)
            if ti == 0 and kb % 4 == 0:
                f['pre'].append(lambda s=kb // 4: (a.wait_vm(('b1', s)), barrier(), stamp(7 + s) if cfg.get('p1probe') else None))
            def reads(slot, tag, kb=kb, ar=ar, o=o):
                return [lambda: I(f'ds_read_b64_tr_b16 {V(RING+4*slot, 2)}, v{ar} offset:{b1a.off(kb*5120, 5120) + o}', tag=tag),
                        lambda: I(f'ds_read_b64_tr_b16 {V(RING+4*slot+2, 2)}, v{ar} offset:{b1a.off(kb*5120, 5120) + o + 1280}', tag=tag)]
            def mf(slot, kb=kb, ti=ti):
                B = V(RING+4*slot, 4); out = []
                for rt in range(2):
                    d = V(ACC + (rt*5 + ti)*4, 4); out.append(f'{MF} {d}, {XF(kb, rt)}, {B}, {d if kb else 0}')
                d = V(CS + ti*4, 4); out.append(f'{MF} {d}, {V(ONES, 4)}, {B}, {d if kb else 0}')
                if ti < 2:
                    d = V(RS + ti*4, 4); out.append(f'{MF} {d}, {XF(kb, ti)}, {V(ONES, 4)}, {d if kb else 0}')
                elif ti < 4:
                    d = V(SQ + (ti-2)*4, 4); out.append(f'{MF} {d}, {XF(kb, ti-2)}, {XF(kb, ti-2)}, {d if kb else 0}')
                return out
            f['reads'] = reads; f['mf'] = mf
            frags.append(f)
    bg = []
    for c in range(3, 10): bg += [((c - 3)*10, g) for g in x_grp(c)]
    for st_, e0 in zip((2, 3, 4), (4, cfg.get('b1s3', 24), cfg.get('b1s4', 44))): bg += [(e0, g) for g in b1_grp(st_)]
    if cfg.get('touch', 1):
        bg += [(cfg.get('t2at', 64), touch(s_, 17, 's_mul_i32 s50, s2, 68')) for s_ in (SWG, SWU, SWD)]
    bg += [(91, g) for g in bq_grps()]
    bg.sort(key=lambda x: x[0])
    left = gemm_loop(a, frags, D, bg, rate=lambda i: 2 if i > 90 else 1)
    stamp()
    barrier()
    E = []; e = E.append
    e('v_mov_b32 v144, 0'); e('v_mov_b32 v145, 0'); e('v_mov_b32 v146, 0'); e('v_mov_b32 v147, 0')
    e(f'v_add_u32 v60, {KVI}, v32')
    e('ds_write_b128 v60, v[144:147]'); e('ds_write_b128 v60, v[144:147] offset:4096')
    MEAN, RSTD = 148, 156
    inv = f2u(1.0/640)
    e(f's_mov_b32 s82, {inv:#x}'); e(f's_mov_b32 s83, {inv:#x}')
    for k in range(8): e(f'v_cndmask_b32 v{RSTD+k}, 0, v{SQ+k}, s[{84+2*(k%4)}:{85+2*(k%4)}]')
    for k in range(0, 8, 2): e(f'v_pk_mul_f32 {P(MEAN+k)}, {P(RS+k)}, s[82:83]')
    for sh in (8, 4, 2, 1):
        for k in range(8): e(f'v_add_f32 v{RSTD+k}, v{RSTD+k}, v{RSTD+k} row_ror:{sh} row_mask:0xf bank_mask:0xf')
    for rt in range(2):
        for ti in range(5):
            for r in (0, 2):
                x = ACC + (rt*5+ti)*4 + r
                e(f'v_pk_fma_f32 {P(x)}, {P(MEAN+4*rt+r)}, {P(CS+4*ti)}, {P(x)} {NEG0}')
    for k in range(0, 8, 2): e(f'v_pk_mul_f32 {P(RSTD+k)}, {P(RSTD+k)}, s[82:83]')
    for k in range(0, 8, 2): e(f'v_pk_fma_f32 {P(RSTD+k)}, {P(MEAN+k)}, {P(MEAN+k)}, {P(RSTD+k)} {NEG0}')
    for k in range(8): e(f'v_max_f32 v{RSTD+k}, 0, v{RSTD+k}')
    for k in range(8): e(f'v_add_f32 v{RSTD+k}, {f2u(1e-5):#x}, v{RSTD+k}')
    for k in range(8): e(f'v_rsq_f32 v{RSTD+k}, v{RSTD+k}')
    e(f's_lshl_b32 s52, {sW}, 9'); e(f's_add_u32 s52, s52, {STAT}')
    e('v_lshlrev_b32 v60, 4, v3'); e('v_add_u32 v60, s52, v60')
    e('s_mov_b64 exec, s[94:95]')
    for rt in range(2):
        e(f'ds_write_b128 v60, {V(MEAN+4*rt, 4)} offset:{rt*128}'); e(f'ds_write_b128 v60, {V(RSTD+4*rt, 4)} offset:{rt*128+64}')
    e('s_mov_b64 exec, -1')
    for rt in range(2):
        for ti in range(5):
            for r in (0, 2):
                x = ACC + (rt*5+ti)*4 + r
                e(f'v_pk_mul_f32 {P(x)}, {P(RSTD+4*rt+r)}, {P(x)}')
    e('v_lshlrev_b32 v60, 2, v2'); e('v_add_u32 v60, s52, v60')
    MQ, RQ = 28, 30
    MQr, RQr = [28, 52], [30, 54]
    for rt in range(2):
        e((f'ds_read_b32 v{MQr[rt]}, v60 offset:{rt*128}', 'st')); e((f'ds_read_b32 v{RQr[rt]}, v60 offset:{rt*128+64}', 'st'))
    def phi(e, pairs, tmp, mask=None):
        n = len(pairs)
        for k, x in enumerate(pairs): e(f'v_pk_mul_f32 {P(tmp+2*k)}, {P(x)}, s[96:97]')
        for k in range(2*n): e(f'v_exp_f32_e64 v{tmp+k}, v{tmp+k} clamp')
        for k, x in enumerate(pairs): e(f'v_pk_add_f32 {P(tmp+2*n+2*k)}, {P(x)}, s[98:99]')
        for k in range(2*n): e(f'v_max_f32 v{tmp+2*n+k}, s98, v{tmp+2*n+k}')
        for k, x in enumerate(pairs): e(f'v_pk_add_f32 {P(x if mask is None else tmp+2*k)}, {P(tmp+2*k)}, {P(tmp+2*n+2*k)}')
        if mask is not None:
            for k, x in enumerate(pairs):
                for h in range(2): e(f'v_cndmask_b32 v{x+h}, v{x+h}, v{tmp+2*k+h}, {mask}')
    phi(e, [ACC + (rt*5+ti)*4 + r for ti in range(2) for rt in range(2) for r in (0, 2)], 164)
    phi(e, [ACC + (rt*5+2)*4 + r for rt in range(2) for r in (0, 2)], 164, mask='s[92:93]')
    FR = 180
    for ti in range(5):
        for rt in range(2):
            b = ACC + (rt*5+ti)*4
            e(f'v_cvt_pk_bf16_f32 v{FR+4*ti+2*rt}, v{b}, v{b+1}'); e(f'v_cvt_pk_bf16_f32 v{FR+4*ti+2*rt+1}, v{b+2}, v{b+3}')
    def merge(E, groups, lo=0.0, hi=1.0):
        groups = list(groups); n = len(E); k = len(groups)
        pos = [int(n*lo + (n*(hi-lo))*(q+0.5)/k) for q in range(k)] if k else []
        inexec = False
        pend = []
        for idx, x in enumerate(E):
            emit(a, [x])
            if isinstance(x, str) and x.startswith('s_mov_b64 exec'): inexec = not x.endswith('-1')
            while pos and pos[0] <= idx: pend.append(groups.pop(0)); pos.pop(0)
            if not inexec:
                for g in pend: emit(a, g)
                pend = []
        for g in pend + groups: emit(a, g)
    merge(E, left, 0.0, 0.5)
    K0, K2, KV1, V0, V2, ON = [V(FR+4*k, 4) for k in range(5)] + [V(ONES, 4)]
    pairs = [(K0, V0), (K2, V2), (KV1, V0), (KV1, V2), (K0, KV1), (K2, KV1), (KV1, KV1), (K0, ON), (K2, ON), (KV1, ON)]
    KD = 200
    for t, (x, y) in enumerate(pairs): I(f'{MF} {V(KD+4*t, 4)}, {x}, {y}, 0')
    I(f's_mul_i32 s50, {sW}, 10240'); I('v_add_u32 v60, s50, v4')
    for t in range(10): I(f'ds_write_b128 v60, {V(KD+4*t, 4)} offset:{t*1024}')
    a.wait_lg(); barrier()
    for w in range(4): I(f'ds_read_b128 {V(KD+4*w, 4)}, v26 offset:{w*10240}')
    I(f's_lshl_b32 s50, {sG}, 16'); I(f's_lshl_b32 s51, {sX}, 13'); I('s_add_u32 s50, s50, s51'); I(f's_lshl_b32 s51, {sRB}, 12'); I('s_add_u32 s50, s50, s51')
    I(f's_add_u32 s50, s50, {PART}'); I('v_mov_b32 v60, 0')
    a.wait_lg()
    for r in (0, 2): I(f'v_pk_add_f32 {P(KD+r)}, {P(KD+r)}, {P(KD+4+r)}')
    for r in (0, 2): I(f'v_pk_add_f32 {P(KD+8+r)}, {P(KD+8+r)}, {P(KD+12+r)}')
    for r in (0, 2): I(f'v_pk_add_f32 {P(KD+r)}, {P(KD+r)}, {P(KD+8+r)}')
    I(f'buffer_store_dwordx4 {V(KD, 4)}, v32, {SWS}, s50 offen sc1', tag='part')
    I(f'buffer_load_dword v33, v60, {SDBG}, 0 offen sc1', tag='rdy')
    a.wait_vm('bq'); barrier()
    stamp()
    QA, QCS = 64, 88
    XRES = 34
    def b2_grps():
        return [[f's_add_u32 m0, s61, {kb*4096}', f's_add_u32 s50, s62, {kb*40*1280 if kb < 16 else (kb-16)*160*1280}',
                 (f'buffer_load_dwordx4 v{23 if kb < 16 else 24}, {SWO}, s50 offen lds', 'b2')] for kb in range(20)]
    def xres_grps():
        return [[f's_add_u32 s50, s60, {rr*16*1280}', (f'buffer_load_dwordx4 {V(XRES+4*rr, 4)}, v46, {SX}, s50 offen', 'xres')] for rr in range(3)]
    def f2_point():
        a.wait_vm(); barrier()
        def b():
            lp = newlab('L_rdy'); ok = newlab('L_rok')
            I(f's_mov_b32 s51, {POLL_LIMIT}'); I('v_mov_b32 v60, 0')
            a.label(lp)
            I('v_readfirstlane_b32 s52, v33'); I('s_cmp_lg_u32 s52, 0'); I(f's_cbranch_scc1 {ok}')
            I(f'buffer_load_dword v33, v60, {SDBG}, 0 offen sc1'); I('s_waitcnt vmcnt(0)')
            I('s_sub_u32 s51, s51, 1'); I('s_cmp_lg_u32 s51, 0'); I(f's_cbranch_scc1 {lp}')
            a.label(ok)
            I(f's_lshl_b32 s50, {sG}, 8'); I('v_mov_b32 v61, 1')
            I('s_mov_b64 exec, 1')
            I(f'buffer_atomic_add v61, v60, {SWS}, s50 offen sc1')
            I('s_mov_b64 exec, -1')
        w0(b)
    frags = []
    tq = [(16, 0), (16, 40), (17, 0)]
    F2AT = cfg.get('f2at', 5)
    for kb in range(20):
        for ti, (ar, o) in enumerate(tq):
            f = {'pre': [], 'post': []}
            def reads(slot, tag, kb=kb, ar=ar, o=o):
                return [lambda: I(f'ds_read_b64_tr_b16 {V(RING+4*slot, 2)}, v{ar} offset:{kb*3072 + o}', tag=tag),
                        lambda: I(f'ds_read_b64_tr_b16 {V(RING+4*slot+2, 2)}, v{ar} offset:{kb*3072 + o + 768}', tag=tag)]
            def mf(slot, kb=kb, ti=ti):
                B = V(RING+4*slot, 4); out = []
                for rt in range(2):
                    d = V(QA + (rt*3+ti)*4, 4); out.append(f'{MF} {d}, {B}, {XF(kb, rt)}, {d if kb else 0}')
                d = V(QCS + ti*4, 4); out.append(f'{MF} {d}, {B}, {V(ONES, 4)}, {d if kb else 0}')
                return out
            f['reads'] = reads; f['mf'] = mf
            if kb == F2AT and ti == 0: f['post'].append(f2_point)
            frags.append(f)
    bg = [(F2AT*3 + 1 + 2*q, g) for q, g in enumerate(b2_grps() + xres_grps())]
    left = gemm_loop(a, frags, D, bg)
    E = []; e = E.append
    for rt in range(2):
        for k in range(0, 12, 2):
            x = QA + rt*12 + k
            e(f'v_pk_fma_f32 {P(x)}, {P(MQr[rt])}, {P(QCS+k)}, {P(x)} op_sel_hi:[0,1,1] {NEG0}')
    for rt in range(2):
        for k in range(0, 12, 2): e(f'v_pk_mul_f32 {P(QA+rt*12+k)}, {P(RQr[rt])}, {P(QA+rt*12+k)} op_sel_hi:[0,1]')
    phi(e, [QA + k for k in range(0, 24, 2)], 164)
    QF = 104
    for rt in range(2):
        for k in range(6): e(f'v_cvt_pk_bf16_f32 v{QF+8*rt+k}, v{QA+rt*12+2*k}, v{QA+rt*12+2*k+1}')
        e(f'v_mov_b32 v{QF+8*rt+6}, 0'); e(f'v_mov_b32 v{QF+8*rt+7}, 0')
    merge(E, left, 0.0, 0.5)
    stamp()
    poll(lambda: I(f's_lshl_b32 s50, {sG}, 8'), 16)
    barrier()
    stamp()
    sig = lambda kb: (13 + kb if kb < 7 else kb - 7)
    def b3_grps(kbs):
        out = []
        for kb in kbs:
            for u, s_ in enumerate((SWG, SWU)):
                out.append([f's_add_u32 m0, s61, {sig(kb)*8192 + u*4096}', f's_add_u32 s50, s63, {kb*32*3456}',
                            (f'buffer_load_dwordx4 v22, {s_}, s50 offen lds', ('b3', kb))])
        return out
    def b4_grps(bs):
        return [[f's_add_u32 m0, s61, {sig((b % 40) >> 1)*8192 + (b & 1)*4096}', f's_add_u32 s50, s62, {b*32*1280}',
                 (f'buffer_load_dwordx4 v21, {SWD}, s50 offen lds', ('b4', b))] for b in bs]
    B3A = b3_grps(range(7)); N1 = cfg.get('b3n1', 4); N2 = cfg.get('b3n2', 6)
    PR = 164
    I(f's_lshl_b32 s50, {sG}, 16'); I(f's_add_u32 s50, s50, {PART}')
    for R in range(16):
        I(f'buffer_load_dwordx4 {V(PR+4*R, 4)}, v32, {SWS}, s50 offen sc1', tag=('pr', R))
        if R < 15: I('s_add_u32 s50, s50, 4096')
    for g in B3A[:N1]: emit(a, g)
    I(f's_lshl_b32 s50, {sX}, 4'); I(f's_lshl_b32 s51, {sRB}, 3'); I('s_add_u32 s50, s50, s51'); I(f's_lshl_b32 s51, {sW}, 1'); I('s_add_u32 s50, s50, s51')
    I('s_mul_i32 s50, s50, 20480'); I(f's_add_u32 s50, s50, {OO}')
    I(f's_lshl_b32 s51, {sG}, 10'); I('s_add_u32 s55, s50, s51')
    I(f's_lshr_b32 s51, {sG}, 2'); I('s_lshl_b32 s51, s51, 10'); I('s_add_u32 s56, s50, s51'); I(f's_and_b32 s51, {sG}, 3'); I('s_lshl_b32 s51, s51, 8'); I('s_add_u32 s56, s56, s51')
    I('s_add_u32 s56, s56, 16384'); I('s_add_u32 s53, s55, 20480'); I('s_add_u32 s54, s56, 20480')
    I('v_lshlrev_b32 v47, 4, v2'); I('v_lshl_add_u32 v47, v3, 3, v47')
    I('v_cmp_eq_u32 vcc, 0, v3'); I(f'v_add_u32 v60, {KVI}, v4')
    for R in range(1, 16):
        a.wait_vm(('pr', R))
        for r in (0, 2): I(f'v_pk_add_f32 {P(PR+r)}, {P(PR+r)}, {P(PR+4*R+r)}')
    I(f'v_cvt_pk_bf16_f32 v{PR+4}, v{PR}, v{PR+1}'); I(f'v_cvt_pk_bf16_f32 v{PR+5}, v{PR+2}, v{PR+3}')
    I(f'ds_write_b64 v27, {V(PR+4, 2)}')
    a.wait_lg(); barrier()
    KF = 164
    for T in (3, 0, 1, 2):
        for k in (2*T, 2*T+1): I(f'ds_read_b128 {V(KF+4*k, 4)}, v60 offset:{k*1024}', tag=('kf', k))
    OA = 64
    for T in (3, 0, 1, 2):
        a.wait_lg(('kf', 2*T+1))
        for rt in range(2):
            d = V(OA + (rt*4+T)*4, 4); I(f'{MF} {d}, {V(KF+8*T, 4)}, {V(QF+8*rt, 4)}, 0')
        for rt in range(2):
            d = V(OA + (rt*4+T)*4, 4); I(f'{MF} {d}, {V(KF+8*T+4, 4)}, {V(QF+8*rt+4, 4)}, {d}')
    OP = 196
    for rt in range(2): I(f'v_pk_add_f32 {P(OA+rt*16+12)}, {P(OA+rt*16+12)}, s[98:99]')
    for rt in range(2):
        b = OA + rt*16
        I(f'v_rcp_f32 v{b+12}, v{b+12}'); I(f'v_rcp_f32 v{b+14}, v{b+13}')
    for rt in range(2):
        b = OA + rt*16
        I(f'v_cndmask_b32 v{OP+16+2*rt}, v{b+14}, v{b+12}, vcc')
    for rt in range(2):
        b = OA + rt*16
        for T, rg in enumerate((b+12, b+14, OP+16+2*rt)):
            for r in (0, 2): I(f'v_pk_mul_f32 {P(b+4*T+r)}, {P(rg)}, {P(b+4*T+r)} op_sel_hi:[0,1]')
        for k in range(6): I(f'v_cvt_pk_bf16_f32 v{OP+8*rt+k}, v{b+2*k}, v{b+2*k+1}')
        I(f'buffer_store_dwordx4 {V(OP+8*rt, 4)}, v4, {SWS}, {"s53" if rt else "s55"} offen sc1')
    I('s_mov_b32 exec_hi, 0')
    for rt in range(2): I(f'buffer_store_dwordx2 {V(OP+8*rt+4, 2)}, v47, {SWS}, {"s54" if rt else "s56"} offen sc1')
    I('s_mov_b32 exec_hi, -1')
    a.wait_vm(); barrier()
    stamp()
    arrive(ctr(16))
    I(f's_cmp_ge_u32 {sI}, 30'); I('s_cbranch_scc1 L_cs')
    for g in B3A[N1:N1+N2]: emit(a, g)
    poll(ctr(16), 32)
    barrier()
    stamp()
    AF2 = lambda kk, rr: A_((kk*3 + rr)*4, 4)
    I('s_mul_i32 s55, s49, 20480'); I(f's_lshl_b32 s50, {sKH}, 10'); I('s_add_u32 s55, s55, s50')
    I(f's_add_u32 s53, s55, {OO}')
    a2 = lambda kk: [[f's_add_u32 s51, s53, {rr*20480 + kk*2048}', (f'buffer_load_dwordx4 {AF2(kk, rr)}, v4, {SWS}, s51 offen sc1', ('a2', kk))] for rr in range(3)]
    N0 = cfg.get('p2n0', 3)
    for kk in range(N0):
        for g in a2(kk): emit(a, g)
    BR = 48
    def set_br(withkh, base):
        if withkh:
            I(f's_lshl_b32 s50, {sKH}, 6'); I('v_xor_b32 v60, s50, v25'); I(f's_lshl_b32 s50, {sKH}, 12'); I(f's_add_u32 s50, s50, {base}')
        else:
            I('v_mov_b32 v60, v25'); I(f's_mov_b32 s50, {base}')
        for t in range(4): I(f'v_xor_b32 v{BR+t}, {t << 5}, v60')
        for t in range(4): I(f'v_add_u32 v{BR+t}, s50, v{BR+t}')
        return AddrSet(a, [BR, BR+1, BR+2, BR+3], base)
    def split_gemm(nk, AF, atag, loc, bset, hooks, bg, rate=lambda i: 1):
        frags = []
        for kk in range(nk):
            for t in range(4):
                f = {'pre': [], 'post': [], 'vm': []}
                def reads(slot, tag, kk=kk, t=t):
                    return [lambda: I(f'ds_read_b64_tr_b16 {V(RING+4*slot, 2)}, v{BR+t} offset:{bset.off(loc(kk), 8192)}', tag=tag),
                            lambda: I(f'ds_read_b64_tr_b16 {V(RING+4*slot+2, 2)}, v{BR+t} offset:{bset.off(loc(kk), 8192) + 2048}', tag=tag)]
                def mf(slot, kk=kk, t=t):
                    return [f'{MF} {V(ACC + (rr*4+t)*4, 4)}, {V(RING+4*slot, 4)}, {AF(kk, rr)}, {V(ACC + (rr*4+t)*4, 4) if kk else 0}' for rr in range(3)]
                f['reads'] = reads; f['mf'] = mf
                if t == 0: f['vm'].append((atag, kk))
                for (hk, ht, where, h) in hooks:
                    if hk == kk and ht == t: f[where].append(h)
                frags.append(f)
        return gemm_loop(a, frags, D, bg, rate)
    def exchange_setup():
        I(f's_mul_i32 s50, {sW}, 6144'); I(f's_add_u32 s50, s50, {EXB}'); I('v_add_u32 v56, s50, v4')
        I(f's_xor_b32 s50, {sW}, 1'); I('s_mul_i32 s50, s50, 6144'); I(f's_add_u32 s50, s50, {EXB}'); I('v_add_u32 v57, s50, v4')
    def exchange(res, E0=()):
        for rr in range(3):
            for t in range(2): I(f'ds_write_b128 v56, {V(ACC+(rr*4+2+t)*4, 4)} offset:{(rr*2+t)*1024}')
        T0 = 124
        for x in E0: emit(a, [x])
        for rr in range(3):
            for k in range(4):
                x = res + 4*rr + k
                I(f'v_lshlrev_b32 v{T0+8*rr+2*k}, 16, v{x}'); I(f'v_and_b32 v{T0+8*rr+2*k+1}, 0xffff0000, v{x}')
        for rr in range(3):
            for k in range(0, 8, 2): I(f'v_pk_add_f32 {P(ACC+rr*16+k)}, {P(ACC+rr*16+k)}, {P(T0+8*rr+k)}')
        a.wait_lg(); barrier()
        for rr in range(3):
            for t in range(2): I(f'ds_read_b128 {V(ACC+(rr*4+2+t)*4, 4)}, v57 offset:{(rr*2+t)*1024}', tag=('ex', rr))
    bset = set_br(True, 0)
    exchange_setup()
    bg = [(0, g) for kk in range(N0, 10) for g in a2(kk)] + [(0, g) for g in B3A[N1+N2:]]
    split_gemm(10, AF2, 'a2', lambda kk: kk*8192, bset, [], bg)
    stamp()
    fix = []
    for rr in range(3):
        fix += [f'v_permlane16_swap_b32 v{XRES+4*rr}, v{XRES+4*rr+2}', f'v_permlane16_swap_b32 v{XRES+4*rr+1}, v{XRES+4*rr+3}']
    exchange(XRES, fix)
    HP = 112; T0 = 164
    E = []; e = E.append
    e(f's_add_u32 s56, s55, {HH}'); e(f's_lshl_b32 s52, {sC2}, 11'); e('s_add_u32 s56, s56, s52')
    e('s_mul_i32 s57, s49, 2560'); e(f's_lshl_b32 s52, {sC2}, 8'); e('s_add_u32 s57, s57, s52'); e(f's_lshl_b32 s52, {sKH}, 7'); e('s_add_u32 s57, s57, s52'); e(f's_add_u32 s57, s57, {ST}')
    e('v_lshlrev_b32 v47, 3, v2')
    for rr in range(3):
        b = ACC + rr*16
        e(lambda rr=rr: a.wait_lg(('ex', rr)))
        for k in range(0, 8, 2): e(f'v_pk_add_f32 {P(b+k)}, {P(b+k)}, {P(b+8+k)}')
        for k in range(4): e(f'v_cvt_pk_bf16_f32 v{HP+4*rr+k}, v{b+2*k}, v{b+2*k+1}')
        e(f's_add_u32 s52, s56, {rr*20480}')
        e(f'buffer_store_dwordx4 {V(HP+4*rr, 4)}, v4, {SWS}, s52 offen sc1')
    for rr in range(3):
        b = ACC + rr*16
        for k in range(4):
            x = HP + 4*rr + k
            e(f'v_lshlrev_b32 v{b+2*k}, 16, v{x}'); e(f'v_and_b32 v{b+2*k+1}, 0xffff0000, v{x}')
    for rr in range(3):
        b = ACC + rr*16
        e(f'v_pk_mul_f32 {P(b+8)}, {P(b)}, {P(b)}')
    for k in (2, 4, 6):
        for rr in range(3):
            b = ACC + rr*16
            e(f'v_pk_fma_f32 {P(b+8)}, {P(b+k)}, {P(b+k)}, {P(b+8)}'); e(f'v_pk_add_f32 {P(b)}, {P(b)}, {P(b+k)}')
    for rr in range(3):
        b = ACC + rr*16
        e(f'v_add_f32 v{T0+4*rr}, v{b}, v{b+1}'); e(f'v_add_f32 v{T0+4*rr+1}, v{b+8}, v{b+9}')
    for sw in ('v_permlane16_swap_b32', 'v_permlane32_swap_b32'):
        for rr in range(3):
            for k in range(2): e(f'v_mov_b32 v{T0+4*rr+2+k}, v{T0+4*rr+k}')
        for rr in range(3):
            for k in range(2): e(f'{sw} v{T0+4*rr+k}, v{T0+4*rr+2+k}')
        for rr in range(3): e(f'v_pk_add_f32 {P(T0+4*rr)}, {P(T0+4*rr)}, {P(T0+4*rr+2)}')
    e('s_mov_b64 exec, 0xffff')
    for rr in range(3):
        e(f's_add_u32 s52, s57, {rr*2560}')
        e(f'buffer_store_dwordx2 {V(T0+4*rr, 2)}, v47, {SWS}, s52 offen sc1')
    e('s_mov_b64 exec, -1')
    merge(E, [])
    a.wait_vm(); barrier()
    stamp()
    arrive(ctr(24))
    I(f's_cmp_ge_u32 {sI}, 27'); I('s_cbranch_scc0 L_p3')
    for g in b4_grps(range(40)): emit(a, g)
    a.wait_vm()
    I('s_branch L_p4')
    a.label('L_p3')
    a.vmq = []; a.lq = []
    NB3 = cfg.get('nb3hop', 10)
    for g in b3_grps(range(7, NB3)): emit(a, g)
    poll(ctr(24), 30)
    barrier()
    stamp()
    AF3 = lambda kb, rr: A_(((kb % 16)*4 + rr)*4, 4)
    I(f's_lshl_b32 s54, {sX}, 4'); I(f's_lshl_b32 s50, {sW}, 2'); I('s_add_u32 s54, s54, s50')
    I('s_mul_i32 s55, s54, 20480'); I(f's_add_u32 s55, s55, {HH}')
    a3 = lambda kb: [[f's_add_u32 s51, s55, {rr*20480 + kb*1024}', (f'buffer_load_dwordx4 {AF3(kb, rr)}, v4, {SWS}, s51 offen sc1', ('a3', kb))] for rr in range(4)]
    LA = cfg.get('p3la', 3)
    for kb in range(LA):
        for g in a3(kb): emit(a, g)
    G3, CS3, RING3 = 64, 192, 224
    stat_regs = list(range(6, 20)) + list(range(26, 46)) + [52, 53, 54, 55, 56, 57]
    sp = [stat_regs[2*k] for k in range(20)]
    for k in range(20): assert stat_regs[2*k+1] == stat_regs[2*k] + 1 and stat_regs[2*k] % 2 == 0
    I('v_lshlrev_b32 v58, 7, v3'); I('v_lshl_add_u32 v58, v2, 3, v58'); I('v_lshlrev_b32 v59, 4, v3'); I('v_mov_b32 v60, 0')
    I('s_mul_i32 s53, s54, 2560'); I(f's_add_u32 s53, s53, {ST}')
    I(f's_lshl_b32 s56, {sI}, 8'); I(f's_add_u32 s56, s56, {CSB}'); I(f's_add_u32 s57, s56, {1728*4}')
    bset = set_br(False, sig(0)*8192)
    I('v_mov_b32 v60, 0')
    st_g = [[f's_add_u32 s51, s53, {rr*2560}', (f'buffer_load_dwordx2 {V(sp[rr*5+ii], 2)}, v58, {SWS}, s51 offen offset:{ii*512} sc1', 'st3')] for rr in range(4) for ii in range(5)]
    cs_g = [[(f'buffer_load_dwordx4 {V(CS3+4*t, 4)}, v59, {SWS}, {"s57" if t >= 4 else "s56"} offen offset:{(t & 3)*64} sc1', 'cs3')] for t in range(8)]
    def cs_check():
        a.wait_vm('csf')
        ok = newlab('L_cok')
        I('v_readfirstlane_b32 s52, v61'); I('s_cmp_ge_u32 s52, 54'); I(f's_cbranch_scc1 {ok}')
        q = list(a.vmq)
        poll_body(lambda: I(f's_mov_b32 s50, {40*256}'), 54)
        a.flush_hazards()
        a.label(ok); a.vmq = q
    NB4L = cfg.get('nb4loop', 16)
    frags = []
    for kb in range(20):
        for t in range(8):
            f = {'pre': [], 'post': [], 'vm': []}
            def reads(slot, tag, kb=kb, t=t):
                o = (t >> 2)*4096
                return [lambda: I(f'ds_read_b64_tr_b16 {V(RING3+4*slot, 2)}, v{BR+(t & 3)} offset:{bset.off(sig(kb)*8192, 8192) + o}', tag=tag),
                        lambda: I(f'ds_read_b64_tr_b16 {V(RING3+4*slot+2, 2)}, v{BR+(t & 3)} offset:{bset.off(sig(kb)*8192, 8192) + o + 2048}', tag=tag)]
            def mf(slot, kb=kb, t=t):
                return [f'{MF} {V(G3 + (rr*8+t)*4, 4)}, {V(RING3+4*slot, 4)}, {AF3(kb, rr)}, {V(G3 + (rr*8+t)*4, 4) if kb else 0}' for rr in range(4)]
            f['reads'] = reads; f['mf'] = mf
            if t == 0: f['vm'].append(('a3', kb))
            if t == 0 and kb >= 7 and (kb - 7) % 3 == 0: f['pre'].append(lambda kb=kb: (a.wait_vm(('b3', min(kb+2, 19))), a.wait_lg() if NB4L else None, barrier()))
            if t == 0 and kb == 15: f['post'].append(cs_check)
            frags.append(f)
    bg = []
    for kb in range(LA, 20):
        bg += [((kb - LA)*8 + 2*q, g) for q, g in enumerate(a3(kb))]
    PACE = cfg.get('b3pace', 4)
    bg += [(1 + PACE*q, g) for q, g in enumerate(b3_grps(range(NB3, 20)))]
    bg += [(3 + 4*q, g) for q, g in enumerate(st_g)]
    b4l = []
    for b_ in range(NB4L):
        need = (b_ >> 1) + 2
        kbb = next(k for k in (7, 10, 13, 16, 19) if k >= need)
        b4l.append(kbb*8 - D + 1)
    t_ = cfg.get('b4at', 81)
    for b_, g in enumerate(b4_grps(range(NB4L))):
        t_ = max(t_, b4l[b_]); bg.append((t_, g)); t_ += cfg.get('b4pace', 4)
    bg += [(13*8 + 1, [f's_mov_b32 s50, {40*256}', (f'buffer_load_dword v61, v60, {SWS}, s50 offen sc1', 'csf')])]
    bg += [(15*8 + 1 + 2*q, g) for q, g in enumerate(cs_g)]
    bg.sort(key=lambda x: x[0])
    left = gemm_loop(a, frags, D, bg)
    assert not left
    stamp()
    a.wait_vm('cs3'); a.wait_vm('st3')
    E = []; e = E.append
    M3, K3, C03, C13 = 224, 232, 240, 6
    e(f's_mov_b32 s82, {inv:#x}'); e(f's_mov_b32 s83, {inv:#x}')
    for ii in range(1, 5):
        for rr in range(4): e(f'v_pk_add_f32 {P(sp[rr*5])}, {P(sp[rr*5])}, {P(sp[rr*5+ii])}')
    for sw in ('v_permlane16_swap_b32', 'v_permlane32_swap_b32'):
        for rr in range(4):
            for k in range(2): e(f'v_mov_b32 v{sp[rr*5+1]+k}, v{sp[rr*5]+k}')
        for rr in range(4):
            for k in range(2): e(f'{sw} v{sp[rr*5]+k}, v{sp[rr*5+1]+k}')
        for rr in range(4): e(f'v_pk_add_f32 {P(sp[rr*5])}, {P(sp[rr*5])}, {P(sp[rr*5+1])}')
    for rr in range(4): e(f'v_pk_mul_f32 {P(M3+2*rr)}, {P(sp[rr*5])}, s[82:83]')
    for rr in range(4): e(f'v_fma_f32 v{K3+2*rr}, -v{M3+2*rr}, v{M3+2*rr}, v{M3+2*rr+1}')
    for rr in range(4): e(f'v_max_f32 v{K3+2*rr}, 0, v{K3+2*rr}')
    for rr in range(4): e(f'v_add_f32 v{K3+2*rr}, {f2u(1e-5):#x}, v{K3+2*rr}')
    for rr in range(4): e(f'v_rsq_f32 v{K3+2*rr+1}, v{K3+2*rr}')
    c0 = -2.0*math.sqrt(2.0/math.pi)*math.log2(math.e); c1 = c0*0.044715
    for rr in range(4): e(f'v_mul_f32 v{C03+2*rr}, {f2u(c0):#x}, v{K3+2*rr+1}')
    for rr in range(4): e(f'v_mul_f32 v{C13+2*rr}, v{K3+2*rr+1}, v{K3+2*rr+1}')
    for rr in range(4): e(f'v_mul_f32 v{C13+2*rr}, v{C13+2*rr}, v{C03+2*rr}')
    for rr in range(4): e(f'v_mul_f32 v{C13+2*rr}, {f2u(0.044715):#x}, v{C13+2*rr}')
    e(f's_mul_i32 s56, s54, {54*1024}'); e(f's_lshl_b32 s57, {sI}, 11'); e('s_add_u32 s56, s56, s57'); e(f's_add_u32 s56, s56, {ACT}')
    TT = 26
    for rr in range(4):
        for hf in range(2):
            gs = [G3 + (rr*8 + 2*hf)*4 + 2*k for k in range(4)]
            cg = [CS3 + (2*hf)*4 + 2*k for k in range(4)]
            tt = [TT + 8*hf + 2*k for k in range(4)]
            for k in range(4): e(f'v_pk_fma_f32 {P(gs[k])}, {P(M3+2*rr)}, {P(cg[k])}, {P(gs[k])} op_sel_hi:[0,1,1] {NEG0}')
            for k in range(4): e(f'v_pk_mul_f32 {P(tt[k])}, {P(gs[k])}, {P(gs[k])}')
            for k in range(4): e(f'v_pk_fma_f32 {P(tt[k])}, {P(tt[k])}, {P(C13+2*rr)}, {P(C03+2*rr)} op_sel_hi:[1,0,0]')
            for k in range(4): e(f'v_pk_mul_f32 {P(tt[k])}, {P(tt[k])}, {P(gs[k])}')
            for k in range(4):
                e(f'v_exp_f32 v{tt[k]}, v{tt[k]}'); e(f'v_exp_f32 v{tt[k]+1}, v{tt[k]+1}')
                e(f'v_pk_fma_f32 {P(gs[k]+16)}, {P(M3+2*rr)}, {P(cg[k]+16)}, {P(gs[k]+16)} op_sel_hi:[0,1,1] {NEG0}')
            for k in range(4): e(f'v_pk_fma_f32 {P(tt[k])}, {P(tt[k])}, {P(K3+2*rr)}, {P(K3+2*rr)} op_sel_hi:[1,0,0]')
            for k in range(4):
                e(f'v_rcp_f32 v{tt[k]}, v{tt[k]}'); e(f'v_rcp_f32 v{tt[k]+1}, v{tt[k]+1}')
                e(f'v_pk_mul_f32 {P(gs[k])}, {P(gs[k])}, {P(gs[k]+16)}')
            for k in range(4): e(f'v_pk_mul_f32 {P(gs[k])}, {P(gs[k])}, {P(tt[k])}')
            pk = 14 if hf == 0 else 52
            pk = [14, 52][hf] if False else (248 if hf == 0 else 52)
            for k in range(4): e(f'v_cvt_pk_bf16_f32 v{pk+k}, v{gs[k]}, v{gs[k]+1}')
            e(f's_add_u32 s57, s56, {rr*54*1024 + hf*1024}')
            e(f'buffer_store_dwordx4 {V(pk, 4)}, v4, {SWS}, s57 offen sc1')
    NB4E = cfg.get('nb4epi', 16)
    if NB4E: barrier()
    merge(E, b4_grps(range(NB4L, NB4L + NB4E)), 0.1, 0.8)
    a.wait_vm(); barrier()
    stamp()
    arrive(ctr(32))
    for g in b4_grps(range(NB4L + NB4E, 40)): emit(a, g)
    a.label('L_p4')
    a.vmq = [('b4', 39)]; a.lq = []
    poll(ctr(32), 27)
    barrier()
    stamp()
    AF4 = lambda kk, rr: (A_((kk*3 + rr)*4, 4) if kk < 21 else V(168 + ((kk-21)*3 + rr)*4, 4))
    I(f's_mul_i32 s55, s49, {54*1024}'); I(f's_lshl_b32 s50, {sKH}, 10'); I('s_add_u32 s55, s55, s50'); I(f's_add_u32 s55, s55, {ACT}')
    a4 = lambda kk: [[f's_add_u32 s51, s55, {rr*54*1024 + kk*2048}', (f'buffer_load_dwordx4 {AF4(kk, rr)}, v4, {SWS}, s51 offen sc1', ('a4', kk))] for rr in range(3)]
    N4 = cfg.get('p4n0', 4)
    for kk in range(N4):
        for g in a4(kk): emit(a, g)
    HR = 112
    I('s_mul_i32 s56, s49, 20480'); I(f's_lshl_b32 s50, {sKH}, 10'); I('s_add_u32 s56, s56, s50'); I(f's_lshl_b32 s50, {sC2}, 11'); I('s_add_u32 s56, s56, s50'); I(f's_add_u32 s56, s56, {HH}')
    h_g = [[f's_add_u32 s51, s56, {rr*20480}', (f'buffer_load_dwordx4 {V(HR+4*rr, 4)}, v4, {SWS}, s51 offen sc1', 'hr')] for rr in range(3)]
    bset = set_br(True, sig(0)*8192)
    exchange_setup()
    I('v_mul_u32_u24 v46, 1280, v2'); I('v_and_b32 v60, 1, v3'); I('v_lshl_add_u32 v46, v60, 5, v46'); I('v_lshrrev_b32 v60, 1, v3'); I('v_lshl_add_u32 v46, v60, 4, v46')
    a.wait_vm(('b4', 39)); barrier()
    hooks = [(7, 0, 'post', barrier), (20, 0, 'pre', lambda: (a.wait_vm(('b4', 53)), a.wait_lg(), barrier()))]
    bg = [(0, g) for kk in range(N4, 14) for g in a4(kk)] + [(29, g) for g in b4_grps(range(40, 54))] + [(0, g) for kk in range(14, 27) for g in a4(kk)] + [(0, g) for g in h_g]
    left = split_gemm(27, AF4, 'a4', lambda kk: sig(kk % 20)*8192, bset, hooks, bg)
    assert not left
    stamp()
    a.wait_vm('hr')
    exchange(HR)
    T0 = 164
    for rr in range(3):
        b = ACC + rr*16
        a.wait_lg(('ex', rr))
        for k in range(0, 8, 2): I(f'v_pk_add_f32 {P(b+k)}, {P(b+k)}, {P(b+8+k)}')
        o = T0 + 4*rr
        for k in range(4): I(f'v_cvt_pk_bf16_f32 v{o+k}, v{b+2*k}, v{b+2*k+1}')
        I(f's_add_u32 s50, s60, {rr*16*1280}')
        I(f'v_permlane16_swap_b32 v{o}, v{o+2}'); I(f'v_permlane16_swap_b32 v{o+1}, v{o+3}')
        I(f'buffer_store_dwordx4 {V(o, 4)}, v46, {SOUT}, s50 offen')
    I('s_branch L_fin')
    a.label('L_cs')
    a.vmq = []; a.lq = []
    I(f's_lshl_b32 s50, {sX}, 1'); I(f's_add_u32 s50, s50, {sI}'); I('s_sub_u32 s50, s50, 30'); I('s_lshl_b32 s50, s50, 2'); I(f's_add_u32 s53, s50, {sW}')
    I('s_cmp_ge_u32 s53, 54'); I('s_cbranch_scc1 L_fin')
    I('s_cmp_lt_u32 s53, 27'); I('s_cselect_b32 s84, s16, s20'); I('s_cselect_b32 s85, s17, s21'); I(f's_mov_b32 s86, {640*3456}'); I('s_mov_b32 s87, 0x20000')
    I('s_cselect_b32 s50, 0, 27'); I('s_sub_u32 s54, s53, s50'); I('s_lshl_b32 s54, s54, 7')
    I('v_lshrrev_b32 v60, 3, v1'); I('v_mul_u32_u24 v5, 3456, v60'); I('v_and_b32 v60, 7, v1'); I('v_lshl_add_u32 v5, v60, 4, v5')
    for k in range(8): I(f'v_mov_b32 v{64+k}, 0')
    for u in range(8):
        I(f'buffer_load_dwordx4 {V(80+4*u, 4)}, v5, s[84:87], s54 offen'); I(f's_add_u32 s54, s54, {8*3456}')
    I('s_mov_b32 s55, 10')
    a.label('L_csl')
    for u in range(8):
        I('s_waitcnt vmcnt(7)')
        for k in range(4):
            I(f'v_lshlrev_b32 v{72+2*k}, 16, v{80+4*u+k}'); I(f'v_and_b32 v{73+2*k}, 0xffff0000, v{80+4*u+k}')
        I(f'buffer_load_dwordx4 {V(80+4*u, 4)}, v5, s[84:87], s54 offen'); I(f's_add_u32 s54, s54, {8*3456}')
        for k in range(0, 8, 2): I(f'v_pk_add_f32 {P(64+k)}, {P(64+k)}, {P(72+k)}')
    I('s_sub_u32 s55, s55, 1'); I('s_cmp_lg_u32 s55, 0'); I('s_cbranch_scc1 L_csl')
    for k in range(8): I(f'v_add_f32 v{64+k}, v{64+k}, v{64+k} row_ror:8 row_mask:0xf bank_mask:0xf')
    for sw in ('v_permlane16_swap_b32', 'v_permlane32_swap_b32'):
        for k in range(8): I(f'v_mov_b32 v{72+k}, v{64+k}')
        for k in range(8): I(f'{sw} v{64+k}, v{72+k}')
        for k in range(0, 8, 2): I(f'v_pk_add_f32 {P(64+k)}, {P(64+k)}, {P(72+k)}')
    I('s_lshl_b32 s50, s53, 8'); I(f's_add_u32 s50, s50, {CSB}'); I('v_lshlrev_b32 v60, 5, v1')
    I('s_mov_b64 exec, 0xff')
    I(f'buffer_store_dwordx4 {V(64, 4)}, v60, {SWS}, s50 offen sc1'); I(f'buffer_store_dwordx4 {V(68, 4)}, v60, {SWS}, s50 offen offset:16 sc1')
    I('s_waitcnt vmcnt(0)')
    I('s_mov_b64 exec, 1'); I('v_mov_b32 v60, 0'); I('v_mov_b32 v61, 1'); I(f's_mov_b32 s50, {40*256}')
    I(f'buffer_atomic_add v61, v60, {SWS}, s50 offen sc1')
    I('s_mov_b64 exec, -1')
    a.flush_hazards()
    a.label('L_fin')
    if stamps:
        stamp(15)
        I(f's_cmp_lg_u32 {sW}, 0'); I('s_cbranch_scc1 L_end')
        I('s_lshl_b32 s50, s2, 6'); I(f's_add_u32 s50, s50, {TS}'); I('v_mov_b32 v60, 0')
        for k in range(16): I(f'v_mov_b32 v{64+k}, s{64+k}')
        I('s_mov_b64 exec, 1')
        for k in range(4): I(f'buffer_store_dwordx4 {V(64+4*k, 4)}, v60, {SWS}, s50 offen offset:{16*k}')
    a.label('L_end')
    I('s_endpgm')
    a.raw('.section .rodata,"a"\n.p2align 6')
    a.raw(f'.amdhsa_kernel {NAME}_kernel')
    a.raw('  .amdhsa_next_free_vgpr 512\n  .amdhsa_next_free_sgpr 102\n  .amdhsa_accum_offset 256\n  .amdhsa_group_segment_fixed_size 0')
    a.raw('  .amdhsa_kernarg_size 80\n  .amdhsa_user_sgpr_count 2\n  .amdhsa_user_sgpr_kernarg_segment_ptr 1\n  .amdhsa_system_sgpr_workgroup_id_x 1\n.end_amdhsa_kernel')
    sys.stderr.write(f'instrs {a.nins} nops {a.nops} auto_vm {a.auto_vm} auto_lg {a.auto_lg}\n')
    return a.text()

if __name__ == '__main__':
    out = sys.argv[1]
    st = 'clk' if 'clk' in sys.argv[2:] else ('stamps' in sys.argv[2:])
    cfg = {x.split('=')[0]: int(x.split('=')[1]) for x in sys.argv[2:] if '=' in x}
    open(out, 'w').write(gen(stamps=st, cfg=cfg))
```

```python
import sys, math, struct
sys.path.insert(0, 'gen')
from asmlib import Asm

NAME = 'sequential_preLN__linear_attn_block__geglu_ffn__prompt'
FLG = 0; CSB = 0x8000; PART = 0x10000; OO = 0x200000; HH = 0x500000; ST = 0x800000; ACT = 0x900000; TS = 0x1000000; WS_SIZE = 0x1100000
XR = 102400; KVI = 81920; STAT = 98304; EXB = 81920
def f2u(x): return struct.unpack('<I', struct.pack('<f', x))[0]
LOG2E = f2u(math.log2(math.e))
SX, SQKV, SWO, SWG, SWU, SWD, SOUT, SWS, SDBG = 's[4:7]', 's[8:11]', 's[12:15]', 's[16:19]', 's[20:23]', 's[24:27]', 's[28:31]', 's[32:35]', 's[36:39]'
sW, sX, sI, sRB, sG, sC2, sRG, sRH, sKH = 's40', 's41', 's42', 's43', 's44', 's45', 's46', 's47', 's48'
def V(b, n=1): return f'v{b}' if n == 1 else f'v[{b}:{b+n-1}]'
def A_(b, n=1): return f'a{b}' if n == 1 else f'a[{b}:{b+n-1}]'
def P(b):
    assert b % 2 == 0
    return f'v[{b}:{b+1}]'
MF = 'v_mfma_f32_16x16x32_bf16'
POLL_LIMIT = 400000
NEG0 = 'neg_lo:[1,0,0] neg_hi:[1,0,0]'

class AddrSet:
    def __init__(self, a, regs, cur): self.a, self.regs, self.cur = a, regs, cur
    def off(self, absolute, span=4096):
        if not (0 <= absolute - self.cur and absolute - self.cur + span <= 65536):
            d = absolute - self.cur
            for r in self.regs: self.a.I(f'v_add_u32 v{r}, {d & 0xffffffff:#x}, v{r}')
            self.cur = absolute
        return absolute - self.cur

def emit(a, g):
    for x in g:
        if callable(x): x()
        elif isinstance(x, tuple): a.I(x[0], tag=x[1])
        else: a.I(x)

def gemm_loop(a, frags, D, bg=None, rate=lambda i: 1):
    n = len(frags); bg = list(bg or [])
    def do_reads(k):
        f = frags[k]
        return [lambda f=f: [h() for h in f.get('pre', [])]] + f['reads'](k % (D + 1), ('f', k))
    for k in range(min(D, n)):
        for c in do_reads(k): c()
    for i in range(n):
        f = frags[i]
        for t in f.get('vm', []):
            assert not any(any(isinstance(x, tuple) and x[1] == t for x in g) for _, g in bg), ('not issued', t)
            a.wait_vm(t)
        a.wait_lg(('f', i))
        ms = f['mf'](i % (D + 1))
        fill = []
        if i + D < n:
            r = do_reads(i + D)
            fill.append(r[0:2]); fill.append(r[2:3])
        for _ in range(rate(i)):
            for q, (e, g) in enumerate(bg):
                if e <= i:
                    fill.append([lambda g=g: emit(a, g)]); bg.pop(q); break
        for k, m in enumerate(ms):
            a.I(m)
            if k < len(fill):
                for c in fill[k]: c()
        for fl in fill[len(ms):]:
            for c in fl: c()
        for h in f.get('post', []): h()
    return [g for _, g in bg]

def gen(stamps=False, cfg=None):
    cfg = cfg or {}
    a = Asm(); I = a.I
    nst = [0]
    def stamp(k=None):
        if k is None:
            k = nst[0]; nst[0] += 1
            if cfg.get('p1probe') and k >= 6: return
        if not stamps: return
        I(('s_memtime' if stamps == 'clk' else 's_memrealtime') + ' s[80:81]'); a.wait_lg(); I(f's_mov_b32 s{64+k}, s80')
    def barrier(): I('s_barrier')
    lab = [0]
    def newlab(p='L'):
        lab[0] += 1; return f'{p}{lab[0]}'
    def w0(body):
        skip = newlab('L_nw')
        q = list(a.vmq)
        I(f's_cmp_lg_u32 {sW}, 0'); I(f's_cbranch_scc1 {skip}')
        body()
        a.flush_hazards()
        a.label(skip)
        a.vmq = q
    def arrive(setup):
        def b():
            setup()
            I('v_mov_b32 v60, 0'); I('v_mov_b32 v61, 1')
            I('s_mov_b64 exec, 1')
            I(f'buffer_atomic_add v61, v60, {SWS}, s50 offen sc1')
            I('s_mov_b64 exec, -1')
        w0(b)
    def poll_body(setup, expect):
        setup()
        lp, done = newlab('L_poll'), newlab('L_pd')
        I('v_mov_b32 v60, 0'); I(f's_mov_b32 s51, {POLL_LIMIT}')
        a.label(lp)
        I(f'buffer_load_dword v61, v60, {SWS}, s50 offen sc1')
        I('s_waitcnt vmcnt(0)')
        I('v_readfirstlane_b32 s52, v61')
        I(f's_cmp_ge_u32 s52, {expect}'); I(f's_cbranch_scc1 {done}')
        I('s_sub_u32 s51, s51, 1'); I('s_cmp_lg_u32 s51, 0'); I(f's_cbranch_scc1 {lp}')
        a.label(done)
    def poll(setup, expect): w0(lambda: poll_body(setup, expect))
    def ctr(base): return lambda: (I(f's_lshl_b32 s50, {sX}, 8'), I(f's_add_u32 s50, s50, {base*256}'))

    a.raw('; @launch grid=(256,1,1) block=(256,1,1) lds=163840')
    a.raw('.amdgcn_target "amdgcn-amd-amdhsa--gfx950"\n.text')
    a.raw(f'.globl {NAME}_kernel\n.p2align 8\n.type {NAME}_kernel,@function\n{NAME}_kernel:')
    I('s_cmp_ge_u32 s2, 256'); I('s_cbranch_scc1 L_end')
    I('s_load_dwordx16 s[64:79], s[0:1], 0'); I('s_load_dwordx4 s[80:83], s[0:1], 64')
    I('v_and_b32 v1, 63, v0'); I('v_and_b32 v2, 15, v0'); I('v_bfe_u32 v3, v0, 4, 2'); I('v_lshlrev_b32 v4, 4, v1')
    I('v_lshrrev_b32 v60, 6, v0'); I(f'v_readfirstlane_b32 {sW}, v60')
    I(f's_and_b32 {sX}, s2, 7'); I(f's_lshr_b32 {sI}, s2, 3'); I(f's_lshr_b32 {sRB}, {sI}, 4'); I(f's_and_b32 {sG}, {sI}, 15')
    I('v_and_b32 v60, 7, v1'); I('v_xor_b32 v60, v60, v3'); I('v_lshlrev_b32 v60, 4, v60')
    I('v_lshrrev_b32 v61, 3, v1'); I('v_mul_u32_u24 v5, 1280, v61'); I('v_add_u32 v5, v5, v60'); I('v_xor_b32 v6, 64, v5')
    I('v_mov_b32 v57, 1280'); I('v_mov_b32 v58, 2480')
    for t in range(5):
        I(f'v_add_u32 v60, {64*t}, v1')
        I('v_mul_u32_u24 v61, 6554, v60'); I('v_lshrrev_b32 v61, 16, v61')
        I('v_mul_u32_u24 v62, 10, v61'); I('v_sub_u32 v62, v60, v62')
        I('v_cmp_lt_u32 vcc, 4, v62')
        I('v_and_b32 v63, 0x13, v61'); I('v_and_b32 v59, 4, v61'); I('v_lshl_or_b32 v63, v59, 1, v63')
        I('v_bfe_u32 v59, v61, 3, 1'); I('v_lshl_or_b32 v63, v59, 2, v63')
        I('v_cndmask_b32 v59, v57, v58, vcc'); I('v_lshl_add_u32 v59, v62, 4, v59')
        I(f'v_mul_u32_u24 v{9+t}, 3840, v63'); I(f'v_add_u32 v{9+t}, v{9+t}, v59')
    I(f's_lshl_b32 s50, {sX}, 8'); I(f's_lshl_b32 s51, {sRB}, 7'); I('s_add_u32 s50, s50, s51'); I(f's_lshl_b32 s51, {sW}, 5'); I('s_add_u32 s50, s50, s51')
    I('s_mul_i32 s53, s50, 1280')
    for q in range(1, 4): I(f's_add_u32 s{53+q}, s53, {q*8*1280}')
    I(f's_mul_i32 s57, {sW}, 12288'); I(f's_add_u32 s57, s57, {XR}')
    I(f's_mul_i32 s58, {sW}, {32*3840}'); I(f's_mul_i32 s50, {sG}, 80'); I('s_add_u32 s58, s58, s50')
    I(f's_mul_i32 s59, {sW}, 5120')
    a.wait_lg()
    def srd(dst, lo, size):
        I(f's_mov_b32 s{dst}, s{lo}'); I(f's_mov_b32 s{dst+1}, s{lo+1}'); I(f's_mov_b32 s{dst+2}, {size}'); I(f's_mov_b32 s{dst+3}, 0x20000')
    srd(4, 64, 2048*1280); srd(8, 66, 640*3840); srd(32, 82, WS_SIZE); srd(36, 80, 256)
    I(f's_or_b32 s50, s2, {sW}'); I('s_cmp_lg_u32 s50, 0'); I('s_cbranch_scc1 L_noinit')
    I('v_lshlrev_b32 v60, 8, v1'); I('v_mov_b32 v61, 0')
    I(f'buffer_store_dword v61, v60, {SWS}, 0 offen sc1')
    I('s_waitcnt vmcnt(0)')
    I('v_mov_b32 v60, 0'); I('v_mov_b32 v61, 1')
    I('s_mov_b64 exec, 1')
    I(f'buffer_store_dword v61, v60, {SDBG}, 0 offen sc1')
    I('s_mov_b64 exec, -1')
    a.label('L_noinit')
    a.vmq = []
    def x_grp(c):
        return [[f's_add_u32 m0, s57, {((c % 3)*4096 + q*1024 - c*128) & 0xffffffff:#x}', 's_nop 0',
                 (f'buffer_load_dwordx4 v{5 + (q & 1)}, {SX}, s{53+q} offen offset:{c*128} lds', ('x', c))] for q in range(4)]
    def b1_grp(s):
        return [[f's_add_u32 m0, s59, {s*20480 + t*1024}', f's_add_u32 s50, s58, {s*128*3840}',
                 (f'buffer_load_dwordx4 v{9+t}, {SQKV}, s50 offen lds', ('b1', s))] for t in range(5)]
    for g in x_grp(0) + x_grp(1) + b1_grp(0): emit(a, g)
    srd(12, 68, 640*1280); srd(16, 72, 640*3456); srd(20, 74, 640*3456); srd(24, 76, 1728*1280); srd(28, 78, 2048*1280)
    stamp()
    def touch(srdn, per_wave, base_setup):
        return [base_setup, f's_mul_i32 s51, {sW}, {per_wave}', 's_add_u32 s50, s50, s51', 's_lshl_b32 s50, s50, 7',
                f's_mov_b64 exec, {(1 << per_wave) - 1:#x}', (f'buffer_load_dword v255, v254, {srdn}, s50 offen', 'touch'), 's_mov_b64 exec, -1']
    I('v_lshlrev_b32 v254, 7, v1')
    if cfg.get('touch', 1):
        emit(a, touch(SQKV, 19, 's_mul_i32 s50, s2, 75'))
    for g in x_grp(2) + b1_grp(1): emit(a, g)
    if cfg.get('touch', 1):
        emit(a, touch(SWO, 7, 's_mul_i32 s50, s2, 25'))
    I('v_lshrrev_b32 v60, 1, v2'); I('v_xor_b32 v60, v60, v3'); I('v_lshlrev_b32 v60, 4, v60'); I('v_lshl_add_u32 v7, v2, 7, v60')
    I('v_add_u32 v7, s57, v7'); I('v_xor_b32 v8, 64, v7')
    I('v_lshrrev_b32 v58, 2, v2'); I('v_and_b32 v60, 1, v3'); I('v_lshl_add_u32 v58, v60, 2, v58')
    I('v_lshrrev_b32 v60, 1, v3'); I('v_lshl_add_u32 v58, v60, 4, v58'); I('v_and_b32 v59, 3, v2')
    I('v_mul_u32_u24 v60, 160, v58'); I('v_lshl_add_u32 v14, v59, 3, v60')
    I('v_and_b32 v61, 1, v59'); I('v_mul_u32_u24 v61, 40, v61'); I('v_lshrrev_b32 v62, 1, v59'); I('v_mul_u32_u24 v62, 80, v62')
    I('v_add_u32 v15, 112, v60'); I('v_add_u32 v15, v15, v61'); I('v_sub_u32 v15, v15, v62')
    I('v_mul_u32_u24 v60, 96, v58'); I(f'v_add_u32 v60, {XR}, v60'); I('v_lshl_add_u32 v16, v59, 3, v60')
    I('v_cmp_eq_u32 vcc, 3, v59'); I('v_mov_b32 v61, 32'); I('v_mov_b32 v62, 72'); I('v_cndmask_b32 v61, v61, v62, vcc'); I('v_add_u32 v17, v60, v61')
    for t in range(3):
        I(f'v_add_u32 v60, {64*t}, v1')
        I('v_mul_u32_u24 v61, 10923, v60'); I('v_lshrrev_b32 v61, 16, v61')
        I('v_mul_u32_u24 v62, 6, v61'); I('v_sub_u32 v62, v60, v62'); I('v_min_u32 v62, 4, v62')
        I('v_and_b32 v63, 0x13, v61'); I('v_and_b32 v57, 4, v61'); I('v_lshl_or_b32 v63, v57, 1, v63')
        I('v_bfe_u32 v57, v61, 3, 1'); I('v_lshl_or_b32 v63, v57, 2, v63')
        I(f'v_mul_u32_u24 v{18+t}, 3840, v63'); I(f'v_lshl_add_u32 v{18+t}, v62, 4, v{18+t}')
    I('v_and_b32 v57, 7, v1'); I('v_lshlrev_b32 v60, 1, v3'); I('v_xor_b32 v57, v57, v60'); I('v_lshlrev_b32 v57, 4, v57')
    I(f's_lshl_b32 s50, {sW}, 3'); I('v_lshrrev_b32 v56, 3, v1'); I('v_add_u32 v56, s50, v56')
    I('v_mul_u32_u24 v21, 1280, v56'); I('v_add_u32 v21, v21, v57')
    I('v_mul_u32_u24 v22, 3456, v56'); I('v_add_u32 v22, v22, v57')
    I(f's_lshr_b32 s50, {sW}, 1'); I(f's_mul_i32 s50, s50, {4*1280}'); I('v_add_u32 v23, s50, v21')
    I('v_bfe_u32 v60, v56, 2, 2'); I('v_mul_u32_u24 v60, 40, v60'); I('v_and_b32 v61, 3, v56'); I('v_add_u32 v60, v60, v61')
    I('v_lshrrev_b32 v61, 4, v56'); I('v_mul_u32_u24 v61, 20, v61'); I('v_add3_u32 v60, v60, v61, 16')
    I('v_mul_u32_u24 v24, 1280, v60'); I('v_add_u32 v24, v24, v57')
    I('v_lshrrev_b32 v60, 2, v2'); I('v_lshl_add_u32 v61, v3, 2, v60'); I('v_lshlrev_b32 v25, 7, v61')
    I('v_bfe_u32 v61, v61, 1, 2'); I('v_lshl_or_b32 v25, v61, 5, v25'); I('v_lshl_or_b32 v25, v59, 3, v25')
    I('v_mul_u32_u24 v46, 1280, v2'); I('v_and_b32 v60, 1, v3'); I('v_lshl_add_u32 v46, v60, 5, v46'); I('v_lshrrev_b32 v60, 1, v3'); I('v_lshl_add_u32 v46, v60, 4, v46')
    I('v_lshlrev_b32 v32, 4, v0')
    I(f's_mul_i32 {sRG}, {sI}, 26'); I(f's_lshr_b32 {sRG}, {sRG}, 8')
    I(f's_mul_i32 s50, {sRG}, 10'); I(f's_sub_u32 {sC2}, {sI}, s50')
    I(f's_lshr_b32 {sRH}, {sW}, 1'); I(f's_and_b32 {sKH}, {sW}, 1')
    I(f's_lshl_b32 s49, {sX}, 4'); I(f's_mul_i32 s50, {sRG}, 5'); I('s_add_u32 s49, s49, s50'); I(f's_mul_i32 s50, {sRH}, 3'); I('s_add_u32 s49, s49, s50')
    I(f's_mul_i32 s60, s49, {16*1280}'); I(f's_lshl_b32 s50, {sC2}, 7'); I('s_add_u32 s60, s60, s50'); I(f's_lshl_b32 s50, {sKH}, 6'); I('s_add_u32 s60, s60, s50')
    I(f's_lshl_b32 s61, {sW}, 10'); I(f's_lshl_b32 s62, {sC2}, 7'); I(f's_lshl_b32 s63, {sI}, 7')
    I(f's_cmp_eq_u32 {sW}, 2'); I('s_cbranch_scc1 L_im2'); I(f's_cmp_eq_u32 {sW}, 3'); I('s_cbranch_scc1 L_im3')
    I('v_add_u32 v26, s61, v4')
    I(f's_mul_i32 s50, {sW}, {2048+8}'); I(f's_add_u32 s50, s50, {KVI}'); I('v_add_u32 v27, s50, v4')
    I('s_branch L_imd')
    a.label('L_im2')
    I('v_lshl_add_u32 v60, v3, 4, v2'); I('v_add_u32 v60, 32, v60')
    I('v_lshrrev_b32 v61, 2, v2'); I('v_lshl_add_u32 v61, v61, 4, v59'); I('v_and_b32 v62, 1, v3'); I('v_lshl_add_u32 v61, v62, 2, v61')
    I('v_cmp_gt_u32 vcc, 2, v3'); I('v_cndmask_b32 v60, v61, v60, vcc'); I('v_lshlrev_b32 v60, 4, v60')
    I('v_add_u32 v61, 2, v3'); I('v_lshl_add_u32 v26, v61, 10, v60')
    I('v_lshlrev_b32 v61, 11, v3'); I('v_add_u32 v61, 1024, v61')
    I('v_lshlrev_b32 v62, 3, v62'); I('v_add_u32 v62, 4096, v62')
    I('v_cndmask_b32 v61, v62, v61, vcc'); I(f'v_add_u32 v61, {KVI}, v61'); I('v_add_u32 v27, v61, v60')
    I('s_branch L_imd')
    a.label('L_im3')
    I('v_bfe_u32 v61, v2, 2, 1')
    I('v_lshl_add_u32 v60, v61, 4, v2'); I('v_add_u32 v60, 32, v60')
    I('v_mul_u32_u24 v62, 17, v61'); I('v_lshl_add_u32 v62, v59, 2, v62'); I('v_add_u32 v62, 32, v62')
    I('v_cmp_gt_u32 vcc, 8, v2'); I('v_cndmask_b32 v60, v62, v60, vcc')
    I('v_mov_b32 v61, 9216'); I('v_mov_b32 v62, 6144'); I('v_cndmask_b32 v61, v61, v62, vcc')
    I('v_mov_b32 v62, 7168'); I('v_mov_b32 v63, 5120'); I('v_cndmask_b32 v62, v62, v63, vcc')
    I('v_lshrrev_b32 v63, 2, v2'); I('v_lshlrev_b32 v63, 4, v63'); I('v_lshl_add_u32 v63, v59, 2, v63')
    I('v_lshrrev_b32 v57, 1, v3'); I('v_add_u32 v63, v63, v57')
    I('v_add_u32 v56, 6, v3'); I('v_lshlrev_b32 v56, 10, v56')
    I('v_lshlrev_b32 v57, 3, v57'); I('v_add_u32 v57, 6144, v57')
    I('v_cmp_eq_u32 vcc, 0, v3')
    I('v_cndmask_b32 v60, v63, v60, vcc'); I('v_cndmask_b32 v61, v56, v61, vcc'); I('v_cndmask_b32 v62, v57, v62, vcc')
    I('v_lshlrev_b32 v60, 4, v60'); I('v_add_u32 v26, v61, v60'); I('v_add_u32 v27, v62, v60'); I(f'v_add_u32 v27, {KVI}, v27')
    I('v_cmp_eq_u32 vcc, 3, v3'); I(f'v_mov_b32 v60, {KVI+8192}'); I('v_lshl_add_u32 v60, v2, 3, v60')
    I('v_cndmask_b32 v27, v27, v60, vcc'); I('v_cndmask_b32 v26, v26, v4, vcc')
    a.flush_hazards()
    a.label('L_imd')
    I('v_lshlrev_b32 v60, 2, v3')
    for r in range(4):
        I(f'v_add_u32 v61, {r}, v60'); I(f'v_cmp_eq_u32 s[{84+2*r}:{85+2*r}], v61, v2')
    I('v_cmp_lt_u32 s[92:93], 7, v2'); I('v_cmp_eq_u32 s[94:95], 0, v2')
    ONES = 140
    for r in range(4): I(f'v_mov_b32 v{ONES+r}, 0x3f803f80')
    I(f's_mov_b32 s96, {LOG2E:#x}'); I(f's_mov_b32 s97, {LOG2E:#x}'); I(f's_mov_b32 s98, {f2u(1e-6):#x}'); I(f's_mov_b32 s99, {f2u(1e-6):#x}')

    ACC, CS, RS, SQ, RING = 64, 104, 124, 132, 144
    D = 4
    XF = lambda kb, rt: A_((kb*2 + rt)*4, 4)
    b1a = AddrSet(a, [14, 15], 0)
    tiles1 = [(14, 0), (14, 40), (15, 0), (14, 80), (14, 120)]
    def bq_grps():
        return [[f's_add_u32 m0, s100, {n*12288 + t*1024}', f's_add_u32 s50, s58, {n*128*3840}',
                 (f'buffer_load_dwordx4 v{18+t}, {SQKV}, s50 offen lds', 'bq')] for n in range(5) for t in range(3)]
    I(f's_mul_i32 s100, {sW}, 3072'); I(f's_add_u32 s100, s100, {XR}')
    frags = []
    for kb in range(20):
        for ti, (ar, o) in enumerate(tiles1):
            f = {'pre': [], 'post': []}
            if ti == 0 and kb % 2 == 0:
                def pre_x(c=kb // 2):
                    a.wait_vm(('x', c))
                    if c == 0 and cfg.get('p1probe'): stamp(6)
                    if c == 9 and cfg.get('p1probe'): stamp(12)
                    for hh in range(2):
                        for rt in range(2):
                            I(f'ds_read_b128 {XF(2*c+hh, rt)}, v{7+hh} offset:{(c % 3)*4096 + rt*2048}', tag=('xr', c))
                f['pre'].append(pre_x)
                if kb == 18: f['post'].append(barrier)
            if ti == 0 and kb % 4 == 0:
                f['pre'].append(lambda s=kb // 4: (a.wait_vm(('b1', s)), barrier(), stamp(7 + s) if cfg.get('p1probe') else None))
            def reads(slot, tag, kb=kb, ar=ar, o=o):
                return [lambda: I(f'ds_read_b64_tr_b16 {V(RING+4*slot, 2)}, v{ar} offset:{b1a.off(kb*5120, 5120) + o}', tag=tag),
                        lambda: I(f'ds_read_b64_tr_b16 {V(RING+4*slot+2, 2)}, v{ar} offset:{b1a.off(kb*5120, 5120) + o + 1280}', tag=tag)]
            def mf(slot, kb=kb, ti=ti):
                B = V(RING+4*slot, 4); out = []
                for rt in range(2):
                    d = V(ACC + (rt*5 + ti)*4, 4); out.append(f'{MF} {d}, {XF(kb, rt)}, {B}, {d if kb else 0}')
                d = V(CS + ti*4, 4); out.append(f'{MF} {d}, {V(ONES, 4)}, {B}, {d if kb else 0}')
                if ti < 2:
                    d = V(RS + ti*4, 4); out.append(f'{MF} {d}, {XF(kb, ti)}, {V(ONES, 4)}, {d if kb else 0}')
                elif ti < 4:
                    d = V(SQ + (ti-2)*4, 4); out.append(f'{MF} {d}, {XF(kb, ti-2)}, {XF(kb, ti-2)}, {d if kb else 0}')
                return out
            f['reads'] = reads; f['mf'] = mf
            frags.append(f)
    bg = []
    for c in range(3, 10): bg += [((c - 3)*10, g) for g in x_grp(c)]
    for st_, e0 in zip((2, 3, 4), (4, cfg.get('b1s3', 24), cfg.get('b1s4', 44))): bg += [(e0, g) for g in b1_grp(st_)]
    if cfg.get('touch', 1):
        bg += [(cfg.get('t2at', 64), touch(s_, 17, 's_mul_i32 s50, s2, 68')) for s_ in (SWG, SWU, SWD)]
    bg += [(91, g) for g in bq_grps()]
    bg.sort(key=lambda x: x[0])
    left = gemm_loop(a, frags, D, bg, rate=lambda i: 2 if i > 90 else 1)
    stamp()
    barrier()
    E = []; e = E.append
    e('v_mov_b32 v144, 0'); e('v_mov_b32 v145, 0'); e('v_mov_b32 v146, 0'); e('v_mov_b32 v147, 0')
    e(f'v_add_u32 v60, {KVI}, v32')
    e('ds_write_b128 v60, v[144:147]'); e('ds_write_b128 v60, v[144:147] offset:4096')
    MEAN, RSTD = 148, 156
    inv = f2u(1.0/640)
    e(f's_mov_b32 s82, {inv:#x}'); e(f's_mov_b32 s83, {inv:#x}')
    for k in range(8): e(f'v_cndmask_b32 v{RSTD+k}, 0, v{SQ+k}, s[{84+2*(k%4)}:{85+2*(k%4)}]')
    for k in range(0, 8, 2): e(f'v_pk_mul_f32 {P(MEAN+k)}, {P(RS+k)}, s[82:83]')
    for sh in (8, 4, 2, 1):
        for k in range(8): e(f'v_add_f32 v{RSTD+k}, v{RSTD+k}, v{RSTD+k} row_ror:{sh} row_mask:0xf bank_mask:0xf')
    for rt in range(2):
        for ti in range(5):
            for r in (0, 2):
                x = ACC + (rt*5+ti)*4 + r
                e(f'v_pk_fma_f32 {P(x)}, {P(MEAN+4*rt+r)}, {P(CS+4*ti)}, {P(x)} {NEG0}')
    for k in range(0, 8, 2): e(f'v_pk_mul_f32 {P(RSTD+k)}, {P(RSTD+k)}, s[82:83]')
    for k in range(0, 8, 2): e(f'v_pk_fma_f32 {P(RSTD+k)}, {P(MEAN+k)}, {P(MEAN+k)}, {P(RSTD+k)} {NEG0}')
    for k in range(8): e(f'v_max_f32 v{RSTD+k}, 0, v{RSTD+k}')
    for k in range(8): e(f'v_add_f32 v{RSTD+k}, {f2u(1e-5):#x}, v{RSTD+k}')
    for k in range(8): e(f'v_rsq_f32 v{RSTD+k}, v{RSTD+k}')
    e(f's_lshl_b32 s52, {sW}, 9'); e(f's_add_u32 s52, s52, {STAT}')
    e('v_lshlrev_b32 v60, 4, v3'); e('v_add_u32 v60, s52, v60')
    e('s_mov_b64 exec, s[94:95]')
    for rt in range(2):
        e(f'ds_write_b128 v60, {V(MEAN+4*rt, 4)} offset:{rt*128}'); e(f'ds_write_b128 v60, {V(RSTD+4*rt, 4)} offset:{rt*128+64}')
    e('s_mov_b64 exec, -1')
    for rt in range(2):
        for ti in range(5):
            for r in (0, 2):
                x = ACC + (rt*5+ti)*4 + r
                e(f'v_pk_mul_f32 {P(x)}, {P(RSTD+4*rt+r)}, {P(x)}')
    e('v_lshlrev_b32 v60, 2, v2'); e('v_add_u32 v60, s52, v60')
    MQ, RQ = 28, 30
    MQr, RQr = [28, 52], [30, 54]
    for rt in range(2):
        e((f'ds_read_b32 v{MQr[rt]}, v60 offset:{rt*128}', 'st')); e((f'ds_read_b32 v{RQr[rt]}, v60 offset:{rt*128+64}', 'st'))
    def phi(e, pairs, tmp, mask=None):
        n = len(pairs)
        for k, x in enumerate(pairs): e(f'v_pk_mul_f32 {P(tmp+2*k)}, {P(x)}, s[96:97]')
        for k in range(2*n): e(f'v_exp_f32_e64 v{tmp+k}, v{tmp+k} clamp')
        for k, x in enumerate(pairs): e(f'v_pk_add_f32 {P(tmp+2*n+2*k)}, {P(x)}, s[98:99]')
        for k in range(2*n): e(f'v_max_f32 v{tmp+2*n+k}, s98, v{tmp+2*n+k}')
        for k, x in enumerate(pairs): e(f'v_pk_add_f32 {P(x if mask is None else tmp+2*k)}, {P(tmp+2*k)}, {P(tmp+2*n+2*k)}')
        if mask is not None:
            for k, x in enumerate(pairs):
                for h in range(2): e(f'v_cndmask_b32 v{x+h}, v{x+h}, v{tmp+2*k+h}, {mask}')
    phi(e, [ACC + (rt*5+ti)*4 + r for ti in range(2) for rt in range(2) for r in (0, 2)], 164)
    phi(e, [ACC + (rt*5+2)*4 + r for rt in range(2) for r in (0, 2)], 164, mask='s[92:93]')
    FR = 180
    for ti in range(5):
        for rt in range(2):
            b = ACC + (rt*5+ti)*4
            e(f'v_cvt_pk_bf16_f32 v{FR+4*ti+2*rt}, v{b}, v{b+1}'); e(f'v_cvt_pk_bf16_f32 v{FR+4*ti+2*rt+1}, v{b+2}, v{b+3}')
    def merge(E, groups, lo=0.0, hi=1.0):
        groups = list(groups); n = len(E); k = len(groups)
        pos = [int(n*lo + (n*(hi-lo))*(q+0.5)/k) for q in range(k)] if k else []
        inexec = False
        pend = []
        for idx, x in enumerate(E):
            emit(a, [x])
            if isinstance(x, str) and x.startswith('s_mov_b64 exec'): inexec = not x.endswith('-1')
            while pos and pos[0] <= idx: pend.append(groups.pop(0)); pos.pop(0)
            if not inexec:
                for g in pend: emit(a, g)
                pend = []
        for g in pend + groups: emit(a, g)
    merge(E, left, 0.0, 0.5)
    K0, K2, KV1, V0, V2, ON = [V(FR+4*k, 4) for k in range(5)] + [V(ONES, 4)]
    pairs = [(K0, V0), (K2, V2), (KV1, V0), (KV1, V2), (K0, KV1), (K2, KV1), (KV1, KV1), (K0, ON), (K2, ON), (KV1, ON)]
    KD = 200
    for t, (x, y) in enumerate(pairs): I(f'{MF} {V(KD+4*t, 4)}, {x}, {y}, 0')
    I(f's_mul_i32 s50, {sW}, 10240'); I('v_add_u32 v60, s50, v4')
    for t in range(10): I(f'ds_write_b128 v60, {V(KD+4*t, 4)} offset:{t*1024}')
    a.wait_lg(); barrier()
    for w in range(4): I(f'ds_read_b128 {V(KD+4*w, 4)}, v26 offset:{w*10240}')
    I(f's_lshl_b32 s50, {sG}, 16'); I(f's_lshl_b32 s51, {sX}, 13'); I('s_add_u32 s50, s50, s51'); I(f's_lshl_b32 s51, {sRB}, 12'); I('s_add_u32 s50, s50, s51')
    I(f's_add_u32 s50, s50, {PART}'); I('v_mov_b32 v60, 0')
    a.wait_lg()
    for r in (0, 2): I(f'v_pk_add_f32 {P(KD+r)}, {P(KD+r)}, {P(KD+4+r)}')
    for r in (0, 2): I(f'v_pk_add_f32 {P(KD+8+r)}, {P(KD+8+r)}, {P(KD+12+r)}')
    for r in (0, 2): I(f'v_pk_add_f32 {P(KD+r)}, {P(KD+r)}, {P(KD+8+r)}')
    I(f'buffer_store_dwordx4 {V(KD, 4)}, v32, {SWS}, s50 offen sc1', tag='part')
    I(f'buffer_load_dword v33, v60, {SDBG}, 0 offen sc1', tag='rdy')
    a.wait_vm('bq'); barrier()
    stamp()
    QA, QCS = 64, 88
    XRES = 34
    def b2_grps():
        return [[f's_add_u32 m0, s61, {kb*4096}', f's_add_u32 s50, s62, {kb*40*1280 if kb < 16 else (kb-16)*160*1280}',
                 (f'buffer_load_dwordx4 v{23 if kb < 16 else 24}, {SWO}, s50 offen lds', 'b2')] for kb in range(20)]
    def xres_grps():
        return [[f's_add_u32 s50, s60, {rr*16*1280}', (f'buffer_load_dwordx4 {V(XRES+4*rr, 4)}, v46, {SX}, s50 offen', 'xres')] for rr in range(3)]
    def f2_point():
        a.wait_vm(); barrier()
        def b():
            lp = newlab('L_rdy'); ok = newlab('L_rok')
            I(f's_mov_b32 s51, {POLL_LIMIT}'); I('v_mov_b32 v60, 0')
            a.label(lp)
            I('v_readfirstlane_b32 s52, v33'); I('s_cmp_lg_u32 s52, 0'); I(f's_cbranch_scc1 {ok}')
            I(f'buffer_load_dword v33, v60, {SDBG}, 0 offen sc1'); I('s_waitcnt vmcnt(0)')
            I('s_sub_u32 s51, s51, 1'); I('s_cmp_lg_u32 s51, 0'); I(f's_cbranch_scc1 {lp}')
            a.label(ok)
            I(f's_lshl_b32 s50, {sG}, 8'); I('v_mov_b32 v61, 1')
            I('s_mov_b64 exec, 1')
            I(f'buffer_atomic_add v61, v60, {SWS}, s50 offen sc1')
            I('s_mov_b64 exec, -1')
        w0(b)
    frags = []
    tq = [(16, 0), (16, 40), (17, 0)]
    F2AT = cfg.get('f2at', 5)
    for kb in range(20):
        for ti, (ar, o) in enumerate(tq):
            f = {'pre': [], 'post': []}
            def reads(slot, tag, kb=kb, ar=ar, o=o):
                return [lambda: I(f'ds_read_b64_tr_b16 {V(RING+4*slot, 2)}, v{ar} offset:{kb*3072 + o}', tag=tag),
                        lambda: I(f'ds_read_b64_tr_b16 {V(RING+4*slot+2, 2)}, v{ar} offset:{kb*3072 + o + 768}', tag=tag)]
            def mf(slot, kb=kb, ti=ti):
                B = V(RING+4*slot, 4); out = []
                for rt in range(2):
                    d = V(QA + (rt*3+ti)*4, 4); out.append(f'{MF} {d}, {B}, {XF(kb, rt)}, {d if kb else 0}')
                d = V(QCS + ti*4, 4); out.append(f'{MF} {d}, {B}, {V(ONES, 4)}, {d if kb else 0}')
                return out
            f['reads'] = reads; f['mf'] = mf
            if kb == F2AT and ti == 0: f['post'].append(f2_point)
            frags.append(f)
    bg = [(F2AT*3 + 1 + 2*q, g) for q, g in enumerate(b2_grps() + xres_grps())]
    left = gemm_loop(a, frags, D, bg)
    E = []; e = E.append
    for rt in range(2):
        for k in range(0, 12, 2):
            x = QA + rt*12 + k
            e(f'v_pk_fma_f32 {P(x)}, {P(MQr[rt])}, {P(QCS+k)}, {P(x)} op_sel_hi:[0,1,1] {NEG0}')
    for rt in range(2):
        for k in range(0, 12, 2): e(f'v_pk_mul_f32 {P(QA+rt*12+k)}, {P(RQr[rt])}, {P(QA+rt*12+k)} op_sel_hi:[0,1]')
    phi(e, [QA + k for k in range(0, 24, 2)], 164)
    QF = 104
    for rt in range(2):
        for k in range(6): e(f'v_cvt_pk_bf16_f32 v{QF+8*rt+k}, v{QA+rt*12+2*k}, v{QA+rt*12+2*k+1}')
        e(f'v_mov_b32 v{QF+8*rt+6}, 0'); e(f'v_mov_b32 v{QF+8*rt+7}, 0')
    merge(E, left, 0.0, 0.5)
    stamp()
    poll(lambda: I(f's_lshl_b32 s50, {sG}, 8'), 16)
    barrier()
    stamp()
    sig = lambda kb: (13 + kb if kb < 7 else kb - 7)
    def b3_grps(kbs):
        out = []
        for kb in kbs:
            for u, s_ in enumerate((SWG, SWU)):
                out.append([f's_add_u32 m0, s61, {sig(kb)*8192 + u*4096}', f's_add_u32 s50, s63, {kb*32*3456}',
                            (f'buffer_load_dwordx4 v22, {s_}, s50 offen lds', ('b3', kb))])
        return out
    def b4_grps(bs):
        return [[f's_add_u32 m0, s61, {sig((b % 40) >> 1)*8192 + (b & 1)*4096}', f's_add_u32 s50, s62, {b*32*1280}',
                 (f'buffer_load_dwordx4 v21, {SWD}, s50 offen lds', ('b4', b))] for b in bs]
    B3A = b3_grps(range(7)); N1 = cfg.get('b3n1', 4); N2 = cfg.get('b3n2', 6)
    PR = 164
    I(f's_lshl_b32 s50, {sG}, 16'); I(f's_add_u32 s50, s50, {PART}')
    for R in range(16):
        I(f'buffer_load_dwordx4 {V(PR+4*R, 4)}, v32, {SWS}, s50 offen sc1', tag=('pr', R))
        if R < 15: I('s_add_u32 s50, s50, 4096')
    for g in B3A[:N1]: emit(a, g)
    I(f's_lshl_b32 s50, {sX}, 4'); I(f's_lshl_b32 s51, {sRB}, 3'); I('s_add_u32 s50, s50, s51'); I(f's_lshl_b32 s51, {sW}, 1'); I('s_add_u32 s50, s50, s51')
    I('s_mul_i32 s50, s50, 20480'); I(f's_add_u32 s50, s50, {OO}')
    I(f's_lshl_b32 s51, {sG}, 10'); I('s_add_u32 s55, s50, s51')
    I(f's_lshr_b32 s51, {sG}, 2'); I('s_lshl_b32 s51, s51, 10'); I('s_add_u32 s56, s50, s51'); I(f's_and_b32 s51, {sG}, 3'); I('s_lshl_b32 s51, s51, 8'); I('s_add_u32 s56, s56, s51')
    I('s_add_u32 s56, s56, 16384'); I('s_add_u32 s53, s55, 20480'); I('s_add_u32 s54, s56, 20480')
    I('v_lshlrev_b32 v47, 4, v2'); I('v_lshl_add_u32 v47, v3, 3, v47')
    I('v_cmp_eq_u32 vcc, 0, v3'); I(f'v_add_u32 v60, {KVI}, v4')
    for R in range(1, 16):
        a.wait_vm(('pr', R))
        for r in (0, 2): I(f'v_pk_add_f32 {P(PR+r)}, {P(PR+r)}, {P(PR+4*R+r)}')
    I(f'v_cvt_pk_bf16_f32 v{PR+4}, v{PR}, v{PR+1}'); I(f'v_cvt_pk_bf16_f32 v{PR+5}, v{PR+2}, v{PR+3}')
    I(f'ds_write_b64 v27, {V(PR+4, 2)}')
    a.wait_lg(); barrier()
    KF = 164
    for T in (3, 0, 1, 2):
        for k in (2*T, 2*T+1): I(f'ds_read_b128 {V(KF+4*k, 4)}, v60 offset:{k*1024}', tag=('kf', k))
    OA = 64
    for T in (3, 0, 1, 2):
        a.wait_lg(('kf', 2*T+1))
        for rt in range(2):
            d = V(OA + (rt*4+T)*4, 4); I(f'{MF} {d}, {V(KF+8*T, 4)}, {V(QF+8*rt, 4)}, 0')
        for rt in range(2):
            d = V(OA + (rt*4+T)*4, 4); I(f'{MF} {d}, {V(KF+8*T+4, 4)}, {V(QF+8*rt+4, 4)}, {d}')
    OP = 196
    for rt in range(2): I(f'v_pk_add_f32 {P(OA+rt*16+12)}, {P(OA+rt*16+12)}, s[98:99]')
    for rt in range(2):
        b = OA + rt*16
        I(f'v_rcp_f32 v{b+12}, v{b+12}'); I(f'v_rcp_f32 v{b+14}, v{b+13}')
    for rt in range(2):
        b = OA + rt*16
        I(f'v_cndmask_b32 v{OP+16+2*rt}, v{b+14}, v{b+12}, vcc')
    for rt in range(2):
        b = OA + rt*16
        for T, rg in enumerate((b+12, b+14, OP+16+2*rt)):
            for r in (0, 2): I(f'v_pk_mul_f32 {P(b+4*T+r)}, {P(rg)}, {P(b+4*T+r)} op_sel_hi:[0,1]')
        for k in range(6): I(f'v_cvt_pk_bf16_f32 v{OP+8*rt+k}, v{b+2*k}, v{b+2*k+1}')
        I(f'buffer_store_dwordx4 {V(OP+8*rt, 4)}, v4, {SWS}, {"s53" if rt else "s55"} offen sc1')
    I('s_mov_b32 exec_hi, 0')
    for rt in range(2): I(f'buffer_store_dwordx2 {V(OP+8*rt+4, 2)}, v47, {SWS}, {"s54" if rt else "s56"} offen sc1')
    I('s_mov_b32 exec_hi, -1')
    a.wait_vm(); barrier()
    stamp()
    arrive(ctr(16))
    I(f's_cmp_ge_u32 {sI}, 30'); I('s_cbranch_scc1 L_cs')
    for g in B3A[N1:N1+N2]: emit(a, g)
    poll(ctr(16), 32)
    barrier()
    stamp()
    AF2 = lambda kk, rr: A_((kk*3 + rr)*4, 4)
    I('s_mul_i32 s55, s49, 20480'); I(f's_lshl_b32 s50, {sKH}, 10'); I('s_add_u32 s55, s55, s50')
    I(f's_add_u32 s53, s55, {OO}')
    a2 = lambda kk: [[f's_add_u32 s51, s53, {rr*20480 + kk*2048}', (f'buffer_load_dwordx4 {AF2(kk, rr)}, v4, {SWS}, s51 offen sc1', ('a2', kk))] for rr in range(3)]
    N0 = cfg.get('p2n0', 3)
    for kk in range(N0):
        for g in a2(kk): emit(a, g)
    BR = 48
    def set_br(withkh, base):
        if withkh:
            I(f's_lshl_b32 s50, {sKH}, 6'); I('v_xor_b32 v60, s50, v25'); I(f's_lshl_b32 s50, {sKH}, 12'); I(f's_add_u32 s50, s50, {base}')
        else:
            I('v_mov_b32 v60, v25'); I(f's_mov_b32 s50, {base}')
        for t in range(4): I(f'v_xor_b32 v{BR+t}, {t << 5}, v60')
        for t in range(4): I(f'v_add_u32 v{BR+t}, s50, v{BR+t}')
        return AddrSet(a, [BR, BR+1, BR+2, BR+3], base)
    def split_gemm(nk, AF, atag, loc, bset, hooks, bg, rate=lambda i: 1):
        frags = []
        for kk in range(nk):
            for t in range(4):
                f = {'pre': [], 'post': [], 'vm': []}
                def reads(slot, tag, kk=kk, t=t):
                    return [lambda: I(f'ds_read_b64_tr_b16 {V(RING+4*slot, 2)}, v{BR+t} offset:{bset.off(loc(kk), 8192)}', tag=tag),
                            lambda: I(f'ds_read_b64_tr_b16 {V(RING+4*slot+2, 2)}, v{BR+t} offset:{bset.off(loc(kk), 8192) + 2048}', tag=tag)]
                def mf(slot, kk=kk, t=t):
                    return [f'{MF} {V(ACC + (rr*4+t)*4, 4)}, {V(RING+4*slot, 4)}, {AF(kk, rr)}, {V(ACC + (rr*4+t)*4, 4) if kk else 0}' for rr in range(3)]
                f['reads'] = reads; f['mf'] = mf
                if t == 0: f['vm'].append((atag, kk))
                for (hk, ht, where, h) in hooks:
                    if hk == kk and ht == t: f[where].append(h)
                frags.append(f)
        return gemm_loop(a, frags, D, bg, rate)
    def exchange_setup():
        I(f's_mul_i32 s50, {sW}, 6144'); I(f's_add_u32 s50, s50, {EXB}'); I('v_add_u32 v56, s50, v4')
        I(f's_xor_b32 s50, {sW}, 1'); I('s_mul_i32 s50, s50, 6144'); I(f's_add_u32 s50, s50, {EXB}'); I('v_add_u32 v57, s50, v4')
    def exchange(res, E0=()):
        for rr in range(3):
            for t in range(2): I(f'ds_write_b128 v56, {V(ACC+(rr*4+2+t)*4, 4)} offset:{(rr*2+t)*1024}')
        T0 = 124
        for x in E0: emit(a, [x])
        for rr in range(3):
            for k in range(4):
                x = res + 4*rr + k
                I(f'v_lshlrev_b32 v{T0+8*rr+2*k}, 16, v{x}'); I(f'v_and_b32 v{T0+8*rr+2*k+1}, 0xffff0000, v{x}')
        for rr in range(3):
            for k in range(0, 8, 2): I(f'v_pk_add_f32 {P(ACC+rr*16+k)}, {P(ACC+rr*16+k)}, {P(T0+8*rr+k)}')
        a.wait_lg(); barrier()
        for rr in range(3):
            for t in range(2): I(f'ds_read_b128 {V(ACC+(rr*4+2+t)*4, 4)}, v57 offset:{(rr*2+t)*1024}', tag=('ex', rr))
    bset = set_br(True, 0)
    exchange_setup()
    bg = [(0, g) for kk in range(N0, 10) for g in a2(kk)] + [(0, g) for g in B3A[N1+N2:]]
    split_gemm(10, AF2, 'a2', lambda kk: kk*8192, bset, [], bg)
    stamp()
    fix = []
    for rr in range(3):
        fix += [f'v_permlane16_swap_b32 v{XRES+4*rr}, v{XRES+4*rr+2}', f'v_permlane16_swap_b32 v{XRES+4*rr+1}, v{XRES+4*rr+3}']
    exchange(XRES, fix)
    HP = 112; T0 = 164
    E = []; e = E.append
    e(f's_add_u32 s56, s55, {HH}'); e(f's_lshl_b32 s52, {sC2}, 11'); e('s_add_u32 s56, s56, s52')
    e('s_mul_i32 s57, s49, 2560'); e(f's_lshl_b32 s52, {sC2}, 8'); e('s_add_u32 s57, s57, s52'); e(f's_lshl_b32 s52, {sKH}, 7'); e('s_add_u32 s57, s57, s52'); e(f's_add_u32 s57, s57, {ST}')
    e('v_lshlrev_b32 v47, 3, v2')
    for rr in range(3):
        b = ACC + rr*16
        e(lambda rr=rr: a.wait_lg(('ex', rr)))
        for k in range(0, 8, 2): e(f'v_pk_add_f32 {P(b+k)}, {P(b+k)}, {P(b+8+k)}')
        for k in range(4): e(f'v_cvt_pk_bf16_f32 v{HP+4*rr+k}, v{b+2*k}, v{b+2*k+1}')
        e(f's_add_u32 s52, s56, {rr*20480}')
        e(f'buffer_store_dwordx4 {V(HP+4*rr, 4)}, v4, {SWS}, s52 offen sc1')
    for rr in range(3):
        b = ACC + rr*16
        for k in range(4):
            x = HP + 4*rr + k
            e(f'v_lshlrev_b32 v{b+2*k}, 16, v{x}'); e(f'v_and_b32 v{b+2*k+1}, 0xffff0000, v{x}')
    for rr in range(3):
        b = ACC + rr*16
        e(f'v_pk_mul_f32 {P(b+8)}, {P(b)}, {P(b)}')
    for k in (2, 4, 6):
        for rr in range(3):
            b = ACC + rr*16
            e(f'v_pk_fma_f32 {P(b+8)}, {P(b+k)}, {P(b+k)}, {P(b+8)}'); e(f'v_pk_add_f32 {P(b)}, {P(b)}, {P(b+k)}')
    for rr in range(3):
        b = ACC + rr*16
        e(f'v_add_f32 v{T0+4*rr}, v{b}, v{b+1}'); e(f'v_add_f32 v{T0+4*rr+1}, v{b+8}, v{b+9}')
    for sw in ('v_permlane16_swap_b32', 'v_permlane32_swap_b32'):
        for rr in range(3):
            for k in range(2): e(f'v_mov_b32 v{T0+4*rr+2+k}, v{T0+4*rr+k}')
        for rr in range(3):
            for k in range(2): e(f'{sw} v{T0+4*rr+k}, v{T0+4*rr+2+k}')
        for rr in range(3): e(f'v_pk_add_f32 {P(T0+4*rr)}, {P(T0+4*rr)}, {P(T0+4*rr+2)}')
    e('s_mov_b64 exec, 0xffff')
    for rr in range(3):
        e(f's_add_u32 s52, s57, {rr*2560}')
        e(f'buffer_store_dwordx2 {V(T0+4*rr, 2)}, v47, {SWS}, s52 offen sc1')
    e('s_mov_b64 exec, -1')
    merge(E, [])
    a.wait_vm(); barrier()
    stamp()
    arrive(ctr(24))
    I(f's_cmp_ge_u32 {sI}, 27'); I('s_cbranch_scc0 L_p3')
    for g in b4_grps(range(40)): emit(a, g)
    a.wait_vm()
    I('s_branch L_p4')
    a.label('L_p3')
    a.vmq = []; a.lq = []
    NB3 = cfg.get('nb3hop', 10)
    for g in b3_grps(range(7, NB3)): emit(a, g)
    poll(ctr(24), 30)
    barrier()
    stamp()
    AF3 = lambda kb, rr: A_(((kb % 16)*4 + rr)*4, 4)
    I(f's_lshl_b32 s54, {sX}, 4'); I(f's_lshl_b32 s50, {sW}, 2'); I('s_add_u32 s54, s54, s50')
    I('s_mul_i32 s55, s54, 20480'); I(f's_add_u32 s55, s55, {HH}')
    a3 = lambda kb: [[f's_add_u32 s51, s55, {rr*20480 + kb*1024}', (f'buffer_load_dwordx4 {AF3(kb, rr)}, v4, {SWS}, s51 offen sc1', ('a3', kb))] for rr in range(4)]
    LA = cfg.get('p3la', 3)
    for kb in range(LA):
        for g in a3(kb): emit(a, g)
    G3, CS3, RING3 = 64, 192, 224
    stat_regs = list(range(6, 20)) + list(range(26, 46)) + [52, 53, 54, 55, 56, 57]
    sp = [stat_regs[2*k] for k in range(20)]
    for k in range(20): assert stat_regs[2*k+1] == stat_regs[2*k] + 1 and stat_regs[2*k] % 2 == 0
    I('v_lshlrev_b32 v58, 7, v3'); I('v_lshl_add_u32 v58, v2, 3, v58'); I('v_lshlrev_b32 v59, 4, v3'); I('v_mov_b32 v60, 0')
    I('s_mul_i32 s53, s54, 2560'); I(f's_add_u32 s53, s53, {ST}')
    I(f's_lshl_b32 s56, {sI}, 8'); I(f's_add_u32 s56, s56, {CSB}'); I(f's_add_u32 s57, s56, {1728*4}')
    bset = set_br(False, sig(0)*8192)
    I('v_mov_b32 v60, 0')
    st_g = [[f's_add_u32 s51, s53, {rr*2560}', (f'buffer_load_dwordx2 {V(sp[rr*5+ii], 2)}, v58, {SWS}, s51 offen offset:{ii*512} sc1', 'st3')] for rr in range(4) for ii in range(5)]
    cs_g = [[(f'buffer_load_dwordx4 {V(CS3+4*t, 4)}, v59, {SWS}, {"s57" if t >= 4 else "s56"} offen offset:{(t & 3)*64} sc1', 'cs3')] for t in range(8)]
    def cs_check():
        a.wait_vm('csf')
        ok = newlab('L_cok')
        I('v_readfirstlane_b32 s52, v61'); I('s_cmp_ge_u32 s52, 54'); I(f's_cbranch_scc1 {ok}')
        q = list(a.vmq)
        poll_body(lambda: I(f's_mov_b32 s50, {40*256}'), 54)
        a.flush_hazards()
        a.label(ok); a.vmq = q
    NB4L = cfg.get('nb4loop', 16)
    frags = []
    for kb in range(20):
        for t in range(8):
            f = {'pre': [], 'post': [], 'vm': []}
            def reads(slot, tag, kb=kb, t=t):
                o = (t >> 2)*4096
                return [lambda: I(f'ds_read_b64_tr_b16 {V(RING3+4*slot, 2)}, v{BR+(t & 3)} offset:{bset.off(sig(kb)*8192, 8192) + o}', tag=tag),
                        lambda: I(f'ds_read_b64_tr_b16 {V(RING3+4*slot+2, 2)}, v{BR+(t & 3)} offset:{bset.off(sig(kb)*8192, 8192) + o + 2048}', tag=tag)]
            def mf(slot, kb=kb, t=t):
                return [f'{MF} {V(G3 + (rr*8+t)*4, 4)}, {V(RING3+4*slot, 4)}, {AF3(kb, rr)}, {V(G3 + (rr*8+t)*4, 4) if kb else 0}' for rr in range(4)]
            f['reads'] = reads; f['mf'] = mf
            if t == 0: f['vm'].append(('a3', kb))
            if t == 0 and kb >= 7 and (kb - 7) % 3 == 0: f['pre'].append(lambda kb=kb: (a.wait_vm(('b3', min(kb+2, 19))), a.wait_lg() if NB4L else None, barrier()))
            if t == 0 and kb == 15: f['post'].append(cs_check)
            frags.append(f)
    bg = []
    for kb in range(LA, 20):
        bg += [((kb - LA)*8 + 2*q, g) for q, g in enumerate(a3(kb))]
    PACE = cfg.get('b3pace', 4)
    bg += [(1 + PACE*q, g) for q, g in enumerate(b3_grps(range(NB3, 20)))]
    bg += [(3 + 4*q, g) for q, g in enumerate(st_g)]
    b4l = []
    for b_ in range(NB4L):
        need = (b_ >> 1) + 2
        kbb = next(k for k in (7, 10, 13, 16, 19) if k >= need)
        b4l.append(kbb*8 - D + 1)
    t_ = cfg.get('b4at', 81)
    for b_, g in enumerate(b4_grps(range(NB4L))):
        t_ = max(t_, b4l[b_]); bg.append((t_, g)); t_ += cfg.get('b4pace', 4)
    bg += [(13*8 + 1, [f's_mov_b32 s50, {40*256}', (f'buffer_load_dword v61, v60, {SWS}, s50 offen sc1', 'csf')])]
    bg += [(15*8 + 1 + 2*q, g) for q, g in enumerate(cs_g)]
    bg.sort(key=lambda x: x[0])
    left = gemm_loop(a, frags, D, bg)
    assert not left
    stamp()
    a.wait_vm('cs3'); a.wait_vm('st3')
    E = []; e = E.append
    M3, K3, C03, C13 = 224, 232, 240, 6
    e(f's_mov_b32 s82, {inv:#x}'); e(f's_mov_b32 s83, {inv:#x}')
    for ii in range(1, 5):
        for rr in range(4): e(f'v_pk_add_f32 {P(sp[rr*5])}, {P(sp[rr*5])}, {P(sp[rr*5+ii])}')
    for sw in ('v_permlane16_swap_b32', 'v_permlane32_swap_b32'):
        for rr in range(4):
            for k in range(2): e(f'v_mov_b32 v{sp[rr*5+1]+k}, v{sp[rr*5]+k}')
        for rr in range(4):
            for k in range(2): e(f'{sw} v{sp[rr*5]+k}, v{sp[rr*5+1]+k}')
        for rr in range(4): e(f'v_pk_add_f32 {P(sp[rr*5])}, {P(sp[rr*5])}, {P(sp[rr*5+1])}')
    for rr in range(4): e(f'v_pk_mul_f32 {P(M3+2*rr)}, {P(sp[rr*5])}, s[82:83]')
    for rr in range(4): e(f'v_fma_f32 v{K3+2*rr}, -v{M3+2*rr}, v{M3+2*rr}, v{M3+2*rr+1}')
    for rr in range(4): e(f'v_max_f32 v{K3+2*rr}, 0, v{K3+2*rr}')
    for rr in range(4): e(f'v_add_f32 v{K3+2*rr}, {f2u(1e-5):#x}, v{K3+2*rr}')
    for rr in range(4): e(f'v_rsq_f32 v{K3+2*rr+1}, v{K3+2*rr}')
    c0 = -2.0*math.sqrt(2.0/math.pi)*math.log2(math.e); c1 = c0*0.044715
    for rr in range(4): e(f'v_mul_f32 v{C03+2*rr}, {f2u(c0):#x}, v{K3+2*rr+1}')
    for rr in range(4): e(f'v_mul_f32 v{C13+2*rr}, v{K3+2*rr+1}, v{K3+2*rr+1}')
    for rr in range(4): e(f'v_mul_f32 v{C13+2*rr}, v{C13+2*rr}, v{C03+2*rr}')
    for rr in range(4): e(f'v_mul_f32 v{C13+2*rr}, {f2u(0.044715):#x}, v{C13+2*rr}')
    e(f's_mul_i32 s56, s54, {54*1024}'); e(f's_lshl_b32 s57, {sI}, 11'); e('s_add_u32 s56, s56, s57'); e(f's_add_u32 s56, s56, {ACT}')
    TT = 26
    for rr in range(4):
        for hf in range(2):
            gs = [G3 + (rr*8 + 2*hf)*4 + 2*k for k in range(4)]
            cg = [CS3 + (2*hf)*4 + 2*k for k in range(4)]
            tt = [TT + 8*hf + 2*k for k in range(4)]
            for k in range(4): e(f'v_pk_fma_f32 {P(gs[k])}, {P(M3+2*rr)}, {P(cg[k])}, {P(gs[k])} op_sel_hi:[0,1,1] {NEG0}')
            for k in range(4): e(f'v_pk_mul_f32 {P(tt[k])}, {P(gs[k])}, {P(gs[k])}')
            for k in range(4): e(f'v_pk_fma_f32 {P(tt[k])}, {P(tt[k])}, {P(C13+2*rr)}, {P(C03+2*rr)} op_sel_hi:[1,0,0]')
            for k in range(4): e(f'v_pk_mul_f32 {P(tt[k])}, {P(tt[k])}, {P(gs[k])}')
            for k in range(4):
                e(f'v_exp_f32 v{tt[k]}, v{tt[k]}'); e(f'v_exp_f32 v{tt[k]+1}, v{tt[k]+1}')
                e(f'v_pk_fma_f32 {P(gs[k]+16)}, {P(M3+2*rr)}, {P(cg[k]+16)}, {P(gs[k]+16)} op_sel_hi:[0,1,1] {NEG0}')
            for k in range(4): e(f'v_pk_fma_f32 {P(tt[k])}, {P(tt[k])}, {P(K3+2*rr)}, {P(K3+2*rr)} op_sel_hi:[1,0,0]')
            for k in range(4):
                e(f'v_rcp_f32 v{tt[k]}, v{tt[k]}'); e(f'v_rcp_f32 v{tt[k]+1}, v{tt[k]+1}')
                e(f'v_pk_mul_f32 {P(gs[k])}, {P(gs[k])}, {P(gs[k]+16)}')
            for k in range(4): e(f'v_pk_mul_f32 {P(gs[k])}, {P(gs[k])}, {P(tt[k])}')
            pk = 14 if hf == 0 else 52
            pk = [14, 52][hf] if False else (248 if hf == 0 else 52)
            for k in range(4): e(f'v_cvt_pk_bf16_f32 v{pk+k}, v{gs[k]}, v{gs[k]+1}')
            e(f's_add_u32 s57, s56, {rr*54*1024 + hf*1024}')
            e(f'buffer_store_dwordx4 {V(pk, 4)}, v4, {SWS}, s57 offen sc1')
    NB4E = cfg.get('nb4epi', 16)
    if NB4E: barrier()
    merge(E, b4_grps(range(NB4L, NB4L + NB4E)), 0.1, 0.8)
    a.wait_vm(); barrier()
    stamp()
    arrive(ctr(32))
    for g in b4_grps(range(NB4L + NB4E, 40)): emit(a, g)
    a.label('L_p4')
    a.vmq = [('b4', 39)]; a.lq = []
    poll(ctr(32), 27)
    barrier()
    stamp()
    AF4 = lambda kk, rr: (A_((kk*3 + rr)*4, 4) if kk < 21 else V(168 + ((kk-21)*3 + rr)*4, 4))
    I(f's_mul_i32 s55, s49, {54*1024}'); I(f's_lshl_b32 s50, {sKH}, 10'); I('s_add_u32 s55, s55, s50'); I(f's_add_u32 s55, s55, {ACT}')
    a4 = lambda kk: [[f's_add_u32 s51, s55, {rr*54*1024 + kk*2048}', (f'buffer_load_dwordx4 {AF4(kk, rr)}, v4, {SWS}, s51 offen sc1', ('a4', kk))] for rr in range(3)]
    N4 = cfg.get('p4n0', 4)
    for kk in range(N4):
        for g in a4(kk): emit(a, g)
    HR = 112
    I('s_mul_i32 s56, s49, 20480'); I(f's_lshl_b32 s50, {sKH}, 10'); I('s_add_u32 s56, s56, s50'); I(f's_lshl_b32 s50, {sC2}, 11'); I('s_add_u32 s56, s56, s50'); I(f's_add_u32 s56, s56, {HH}')
    h_g = [[f's_add_u32 s51, s56, {rr*20480}', (f'buffer_load_dwordx4 {V(HR+4*rr, 4)}, v4, {SWS}, s51 offen sc1', 'hr')] for rr in range(3)]
    bset = set_br(True, sig(0)*8192)
    exchange_setup()
    I('v_mul_u32_u24 v46, 1280, v2'); I('v_and_b32 v60, 1, v3'); I('v_lshl_add_u32 v46, v60, 5, v46'); I('v_lshrrev_b32 v60, 1, v3'); I('v_lshl_add_u32 v46, v60, 4, v46')
    a.wait_vm(('b4', 39)); barrier()
    hooks = [(7, 0, 'post', barrier), (20, 0, 'pre', lambda: (a.wait_vm(('b4', 53)), a.wait_lg(), barrier()))]
    bg = [(0, g) for kk in range(N4, 14) for g in a4(kk)] + [(29, g) for g in b4_grps(range(40, 54))] + [(0, g) for kk in range(14, 27) for g in a4(kk)] + [(0, g) for g in h_g]
    left = split_gemm(27, AF4, 'a4', lambda kk: sig(kk % 20)*8192, bset, hooks, bg)
    assert not left
    stamp()
    a.wait_vm('hr')
    exchange(HR)
    T0 = 164
    for rr in range(3):
        b = ACC + rr*16
        a.wait_lg(('ex', rr))
        for k in range(0, 8, 2): I(f'v_pk_add_f32 {P(b+k)}, {P(b+k)}, {P(b+8+k)}')
        o = T0 + 4*rr
        for k in range(4): I(f'v_cvt_pk_bf16_f32 v{o+k}, v{b+2*k}, v{b+2*k+1}')
        I(f's_add_u32 s50, s60, {rr*16*1280}')
        I(f'v_permlane16_swap_b32 v{o}, v{o+2}'); I(f'v_permlane16_swap_b32 v{o+1}, v{o+3}')
        I(f'buffer_store_dwordx4 {V(o, 4)}, v46, {SOUT}, s50 offen')
    I('s_branch L_fin')
    a.label('L_cs')
    a.vmq = []; a.lq = []
    I(f's_lshl_b32 s50, {sX}, 1'); I(f's_add_u32 s50, s50, {sI}'); I('s_sub_u32 s50, s50, 30'); I('s_lshl_b32 s50, s50, 2'); I(f's_add_u32 s53, s50, {sW}')
    I('s_cmp_ge_u32 s53, 54'); I('s_cbranch_scc1 L_fin')
    I('s_cmp_lt_u32 s53, 27'); I('s_cselect_b32 s84, s16, s20'); I('s_cselect_b32 s85, s17, s21'); I(f's_mov_b32 s86, {640*3456}'); I('s_mov_b32 s87, 0x20000')
    I('s_cselect_b32 s50, 0, 27'); I('s_sub_u32 s54, s53, s50'); I('s_lshl_b32 s54, s54, 7')
    I('v_lshrrev_b32 v60, 3, v1'); I('v_mul_u32_u24 v5, 3456, v60'); I('v_and_b32 v60, 7, v1'); I('v_lshl_add_u32 v5, v60, 4, v5')
    for k in range(8): I(f'v_mov_b32 v{64+k}, 0')
    for u in range(8):
        I(f'buffer_load_dwordx4 {V(80+4*u, 4)}, v5, s[84:87], s54 offen'); I(f's_add_u32 s54, s54, {8*3456}')
    I('s_mov_b32 s55, 10')
    a.label('L_csl')
    for u in range(8):
        I('s_waitcnt vmcnt(7)')
        for k in range(4):
            I(f'v_lshlrev_b32 v{72+2*k}, 16, v{80+4*u+k}'); I(f'v_and_b32 v{73+2*k}, 0xffff0000, v{80+4*u+k}')
        I(f'buffer_load_dwordx4 {V(80+4*u, 4)}, v5, s[84:87], s54 offen'); I(f's_add_u32 s54, s54, {8*3456}')
        for k in range(0, 8, 2): I(f'v_pk_add_f32 {P(64+k)}, {P(64+k)}, {P(72+k)}')
    I('s_sub_u32 s55, s55, 1'); I('s_cmp_lg_u32 s55, 0'); I('s_cbranch_scc1 L_csl')
    for k in range(8): I(f'v_add_f32 v{64+k}, v{64+k}, v{64+k} row_ror:8 row_mask:0xf bank_mask:0xf')
    for sw in ('v_permlane16_swap_b32', 'v_permlane32_swap_b32'):
        for k in range(8): I(f'v_mov_b32 v{72+k}, v{64+k}')
        for k in range(8): I(f'{sw} v{64+k}, v{72+k}')
        for k in range(0, 8, 2): I(f'v_pk_add_f32 {P(64+k)}, {P(64+k)}, {P(72+k)}')
    I('s_lshl_b32 s50, s53, 8'); I(f's_add_u32 s50, s50, {CSB}'); I('v_lshlrev_b32 v60, 5, v1')
    I('s_mov_b64 exec, 0xff')
    I(f'buffer_store_dwordx4 {V(64, 4)}, v60, {SWS}, s50 offen sc1'); I(f'buffer_store_dwordx4 {V(68, 4)}, v60, {SWS}, s50 offen offset:16 sc1')
    I('s_waitcnt vmcnt(0)')
    I('s_mov_b64 exec, 1'); I('v_mov_b32 v60, 0'); I('v_mov_b32 v61, 1'); I(f's_mov_b32 s50, {40*256}')
    I(f'buffer_atomic_add v61, v60, {SWS}, s50 offen sc1')
    I('s_mov_b64 exec, -1')
    a.flush_hazards()
    a.label('L_fin')
    if stamps:
        stamp(15)
        I(f's_cmp_lg_u32 {sW}, 0'); I('s_cbranch_scc1 L_end')
        I('s_lshl_b32 s50, s2, 6'); I(f's_add_u32 s50, s50, {TS}'); I('v_mov_b32 v60, 0')
        for k in range(16): I(f'v_mov_b32 v{64+k}, s{64+k}')
        I('s_mov_b64 exec, 1')
        for k in range(4): I(f'buffer_store_dwordx4 {V(64+4*k, 4)}, v60, {SWS}, s50 offen offset:{16*k}')
        if cfg.get('dbgout'):
            I(f's_cmp_lg_u32 s2, {cfg["dbgout"]}'); I('s_cbranch_scc1 L_end')
            for k in range(1, 16): I(f'v_subrev_u32 v{64+k}, s64, v{64+k}')
            I('v_mov_b32 v64, 1')
            for k in range(4): I(f'buffer_store_dwordx4 {V(64+4*k, 4)}, v60, {SDBG}, 0 offen offset:{16*k}')
    a.label('L_end')
    I('s_endpgm')
    a.raw('.section .rodata,"a"\n.p2align 6')
    a.raw(f'.amdhsa_kernel {NAME}_kernel')
    a.raw('  .amdhsa_next_free_vgpr 512\n  .amdhsa_next_free_sgpr 102\n  .amdhsa_accum_offset 256\n  .amdhsa_group_segment_fixed_size 0')
    a.raw('  .amdhsa_kernarg_size 80\n  .amdhsa_user_sgpr_count 2\n  .amdhsa_user_sgpr_kernarg_segment_ptr 1\n  .amdhsa_system_sgpr_workgroup_id_x 1\n.end_amdhsa_kernel')
    sys.stderr.write(f'instrs {a.nins} nops {a.nops} auto_vm {a.auto_vm} auto_lg {a.auto_lg}\n')
    return a.text()

if __name__ == '__main__':
    out = sys.argv[1]
    st = 'clk' if 'clk' in sys.argv[2:] else ('stamps' in sys.argv[2:])
    cfg = {x.split('=')[0]: int(x.split('=')[1]) for x in sys.argv[2:] if '=' in x}
    open(out, 'w').write(gen(stamps=st, cfg=cfg))
```
